```python
import torch

def _softmax(x, axis=-1):
    return torch.softmax(x, dim=axis)
def _gelu(x):
    return torch.nn.functional.gelu(x, approximate="tanh")
def _silu(x):
    return torch.nn.functional.silu(x)
def _sigmoid(x):
    return torch.sigmoid(x)
def _layernorm(x, axis=-1, eps=1e-5):
    m = x.mean(dim=axis, keepdim=True)
    v = x.var(dim=axis, keepdim=True, unbiased=False)
    return (x - m) / torch.sqrt(v + eps)
def _scatter_add(tgt, idx, src, axis=0):
    return tgt.clone().index_add_(axis, idx, src)
def _segment_sum(src, seg, n):
    out = torch.zeros((n,) + src.shape[1:], dtype=src.dtype)
    return out.index_add_(0, seg, src)
def _pad(x, pw):
    flat = tuple(v for pair in reversed(pw) for v in pair)
    return torch.nn.functional.pad(x, flat)

kernel_name = 'standalone__paged_block_table_kv_radixattention__decode'

def setup_inputs():

    _w = (lambda a: (lambda t: t.to(torch.bfloat16) if t.is_floating_point() else t)(torch.as_tensor(a)))
    B, H, Hkv, Dh = 2, 32, 16, 128
    Lk = 4096
    bs = 16
    nb = max(2, Lk // bs)
    P = max(1, nb // 2)
    n_phys = P + B * (nb - P)
    shared = torch.arange(P, dtype=torch.int64)
    priv = P + torch.arange(B * (nb - P), dtype=torch.int64).reshape(B, nb - P)
    bt = torch.cat([torch.tile(shared[None, :], (B, 1)), priv], dim=1)
    ctx = nb * bs - (torch.arange(1, B + 1, dtype=torch.int64) * 2654435761) % max(1, (nb * bs - P * bs) // 2)
    return {
        "q": _w((lambda *s: torch.randn(*s, dtype=torch.bfloat16) * 0.8)(B, H, Dh)),
        "k_cache": _w((lambda *s: torch.randn(*s, dtype=torch.bfloat16) * 0.8)(n_phys, bs, Hkv, Dh)),
        "v_cache": _w((lambda *s: torch.randn(*s, dtype=torch.bfloat16) * 0.05)(n_phys, bs, Hkv, Dh)),
        "block_table": _w(bt.to(torch.int64)),
        "ctx_lens": _w(torch.as_tensor(ctx).to(torch.int64)),
    }

def reference(q, k_cache, v_cache, block_table, ctx_lens):
    B, H, Dh = q.shape
    n_phys, bs, Hkv, _ = k_cache.shape
    nb = block_table.shape[1]
    Lk = nb * bs
    rep = H // Hkv
    k = k_cache[block_table].reshape(B, Lk, Hkv, Dh)
    v = v_cache[block_table].reshape(B, Lk, Hkv, Dh)
    k = (lambda x, n, axis: torch.repeat_interleave(x, n, dim=axis))(k, rep, axis=2)
    v = (lambda x, n, axis: torch.repeat_interleave(x, n, dim=axis))(v, rep, axis=2)
    scores = torch.einsum("bhd,bkhd->bhk", q, k) * (Dh ** -0.5)
    pos = torch.arange(Lk)
    valid = pos[None, :] < ctx_lens[:, None]
    scores = torch.where(valid[:, None, :], scores, -1e9)
    p = _softmax(scores, axis=-1)
    return torch.einsum("bhk,bkhd->bhd", p, v)
```

```python
import sys, math, struct

NAME = "standalone__paged_block_table_kv_radixattention__decode"
HDR = open("cdna_kernels/%s.s.ref" % NAME).read().split("; Override launch")[0]

def f32(x):
    return "0x%08x" % struct.unpack("<I", struct.pack("<f", x))[0]

def gen(kmode="std", stamps=False, nt=False):
    L = []
    A = L.append
    C = (128 ** -0.5) * math.log2(math.e)
    NT = " nt" if nt else ""
    LDS_MAX = 32768
    LDS_L = 32768 + 64
    LDS_FLAG = 32768 + 64 + 256
    LDS_TOTAL = 32768 + 64 + 256 + 64
    nstamp = [0]
    def stamp():
        if not stamps: return
        k = nstamp[0]; nstamp[0] += 1
        A(f"  s_memrealtime s[{70+2*k}:{71+2*k}]")
        A("  s_waitcnt lgkmcnt(0)")
    A(HDR.rstrip())
    A(f"; @launch grid=(256,1,1) block=(1024,1,1) lds={LDS_TOTAL}")
    A('.amdgcn_target "amdgcn-amd-amdhsa--gfx950"')
    A(".text")
    A(f".globl {NAME}_kernel")
    A(".p2align 8")
    A(f".type {NAME}_kernel,@function")
    A(f"{NAME}_kernel:")
    A("  s_cmp_ge_u32 s2, 256")
    A("  s_cbranch_scc1 L_end")
    stamp()
    A("  s_load_dwordx16 s[4:19], s[0:1], 0")
    A("  v_and_b32 v1, 63, v0")
    A("  v_lshrrev_b32 v14, 6, v0")
    A("  v_lshrrev_b32 v2, 4, v1            ; g")
    A("  v_readfirstlane_b32 s28, v14")
    A("  v_and_b32 v3, 15, v1               ; n")
    A("  s_and_b32 s29, s2, 15")
    A("  s_lshr_b32 s30, s2, 4              ; split")
    A("  v_lshlrev_b32 v8, 14, v2")
    A("  v_lshl_add_u32 v8, v3, 4, v8       ; voffV0 = 4g*4096 + 16n")
    A("  v_add_u32 v9, 0x1000, v8")
    A("  v_add_u32 v10, 0x2000, v8")
    A("  v_add_u32 v11, 0x3000, v8")
    A("  v_and_b32 v14, 3, v1               ; u")
    if kmode == "std":
        A("  v_lshlrev_b32 v4, 12, v3")
        A("  v_lshl_add_u32 v4, v2, 4, v4       ; voffK = n*4096 + 16g")
    else:
        A("  v_lshrrev_b32 v4, 2, v3            ; t")
        A("  v_lshlrev_b32 v4, 14, v4")
        A("  v_lshl_add_u32 v4, v2, 6, v4")
        A("  v_lshl_add_u32 v4, v14, 4, v4      ; voffK0 = 4t*4096 + 64g + 16u")
        A("  v_add_u32 v5, 0x1000, v4")
        A("  v_add_u32 v6, 0x2000, v4")
        A("  v_add_u32 v7, 0x3000, v4")
    A("  v_and_b32 v15, 1, v14")
    A("  v_lshlrev_b32 v15, 4, v15")
    A("  v_mov_b32 v120, 0xffff")
    A("  v_lshlrev_b32 v15, v15, v120       ; 0xffff << 16*(u&1)")
    A("  v_cmp_gt_u32 vcc, 2, v14")
    A("  v_lshrrev_b32 v121, 3, v3          ; bsel")
    A("  v_lshlrev_b32 v122, 2, v2          ; 4g")
    A("  v_cndmask_b32 v12, 0, v15, vcc     ; mask0")
    A("  v_xor_b32 v13, v12, v15            ; mask1")
    A("  v_bfe_u32 v15, v3, 2, 1            ; hh")
    A("  v_lshlrev_b32 v15, 8, v15")
    A("  v_lshl_add_u32 v15, v121, 13, v15")
    if kmode == "std":
        A("  v_lshl_add_u32 v15, v2, 4, v15")
    else:
        A("  v_lshl_add_u32 v15, v2, 6, v15")
        A("  v_lshl_add_u32 v15, v14, 4, v15")
    A("  s_lshl_b32 s31, s29, 9")
    A("  v_add_u32 v15, s31, v15            ; q offset")
    A("  v_lshlrev_b32 v123, 4, v1          ; lane*16")
    A("  v_lshrrev_b32 v124, 2, v3")
    A("  v_lshlrev_b32 v124, 4, v124        ; h*16")
    A("  v_add_u32 v125, v124, v122         ; h*16+g*4")
    A(f"  v_mov_b32 v126, {f32(-1e28)}")
    A(f"  v_mov_b32 v127, {f32(-1e30)}")
    A(f"  ds_write_b32 v125, v126 offset:{LDS_MAX}")
    for i in range(8):
        A(f"  v_mov_b32 v{96+i}, 0")
    A("  s_waitcnt lgkmcnt(0)")
    stamp()
    A("  s_load_dwordx2 s[32:33], s[12:13], 0")
    A("  global_load_dwordx4 v[112:115], v123, s[10:11]")
    A("  global_load_dwordx4 v[116:119], v123, s[10:11] offset:1024")
    nq = 4 if kmode == "std" else 1
    for i in range(nq):
        A(f"  global_load_dwordx4 v[{16+4*i}:{19+4*i}], v15, s[4:5] offset:{64*i}")
    A("  s_mov_b32 s20, s6")
    A("  s_mov_b32 s21, s7")
    A("  s_mov_b32 s23, 0x20000")
    A("  s_mov_b32 s24, s8")
    A("  s_mov_b32 s25, s9")
    A("  s_mov_b32 s27, 0x20000")
    A("  s_lshl_b32 s31, s29, 8             ; kvh*256")
    A(f"  s_mov_b32 s68, {f32(C)}")
    A("  s_waitcnt lgkmcnt(0)")
    A("  s_mov_b32 s69, 0")
    for b in range(2):
        s = 32 + b
        A(f"  s_cmp_lt_i32 s{s}, 1")
        A(f"  s_cselect_b32 s34, {1<<b}, 0")
        A(f"  s_cselect_b32 s{s}, 4096, s{s}")
        A(f"  s_or_b32 s69, s69, s34")
        A(f"  s_min_i32 s{s}, s{s}, 4096")
        A(f"  s_add_u32 s{38+b}, s{s}, 15")
        A(f"  s_lshr_b32 s{38+b}, s{38+b}, 4     ; n{b}")
    A(f"  s_waitcnt vmcnt({nq})")
    stamp()
    A("  v_cmp_ne_u64 s[34:35], v[112:113], v[116:117]")
    A("  v_cmp_ne_u64 s[36:37], v[114:115], v[118:119]")
    A("  s_nop 1")
    A("  s_or_b64 s[34:35], s[34:35], s[36:37]")
    A("  s_ff1_i32_b64 s34, s[34:35]")
    A("  s_lshl_b32 s34, s34, 2")
    A("  s_min_u32 s34, s34, s38")
    A("  s_min_u32 s34, s34, s39            ; P")
    A("  s_add_u32 s35, s38, s39")
    A("  s_sub_u32 s35, s35, s34            ; T")
    A("  s_mul_i32 s36, s35, s30")
    A("  s_add_u32 s37, s36, s35")
    A("  s_lshr_b32 s36, s36, 4             ; lo")
    A("  s_lshr_b32 s37, s37, 4             ; hi")
    A("  s_add_u32 s36, s36, s28            ; i0")
    for it in range(2):
        if it == 1:
            A("  s_add_u32 s36, s36, 16             ; i1")
            A("  s_cmp_lt_u32 s36, s37")
            A("  s_cselect_b32 s66, 1, 0")
            A("  s_cbranch_scc0 L_noitem1")
        else:
            A("  s_cmp_lt_u32 s36, s37")
            A("  s_cselect_b32 s22, 25165824, 0")
            A("  s_cselect_b32 s26, 25165824, 0")
            A("  s_cselect_b32 s67, -1, 0")
        A("  s_sub_u32 s46, s36, s38")
        A("  s_add_u32 s46, s46, s34")
        A("  s_add_u32 s47, s46, 256")
        A("  s_cmp_lt_u32 s36, s38              ; i < n0")
        A("  s_cselect_b32 s46, s36, s46        ; j")
        A("  s_cselect_b32 s47, s36, s47        ; e")
        A("  s_cselect_b32 s48, s32, 0")
        A("  s_cselect_b32 s49, 0, s33")
        A("  s_cmp_lt_u32 s36, s34              ; i < P")
        A("  s_cselect_b32 s49, s33, s49")
        if it == 0:
            A("  s_and_b32 s48, s48, s67")
            A("  s_and_b32 s49, s49, s67")
            A("  s_and_b32 s47, s47, s67")
        A("  s_lshl_b32 s46, s46, 4")
        A(f"  s_sub_u32 s{44+it}, s49, s48       ; limB-limA")
        A(f"  s_sub_u32 s{42+it}, s48, s46       ; limA-16j")
        A("  s_bfe_u32 s50, s47, 0x60002        ; lane = (e>>2)&63")
        A("  s_lshr_b32 s51, s47, 8")
        A("  s_and_b32 s47, s47, 3")
        A("  s_lshl2_add_u32 s51, s51, s47")
        A("  s_set_gpr_idx_on s51, gpr_idx(SRC0)")
        A("  v_mov_b32 v14, v112")
        A("  s_set_gpr_idx_off")
        A("  s_nop 0")
        A("  v_readlane_b32 s51, v14, s50")
        A("  s_nop 1")
        A("  s_lshl_b32 s51, s51, 16")
        A(f"  s_add_u32 s{40+it}, s51, s31       ; soffset")
        kb = 32 + 16 * it
        for i in range(4):
            if kmode == "std":
                A(f"  buffer_load_dwordx4 v[{kb+4*i}:{kb+4*i+3}], v4, s[20:23], s{40+it} offen offset:{64*i}{NT}")
            else:
                A(f"  buffer_load_dwordx4 v[{kb+4*i}:{kb+4*i+3}], v{4+i}, s[20:23], s{40+it} offen{NT}")
    for i in range(4):
        A(f"  buffer_load_dwordx4 v[{80+4*i}:{83+4*i}], v{8+i}, s[24:27], s41 offen{NT}")
    A("L_noitem1:")
    for i in range(4):
        A(f"  buffer_load_dwordx4 v[{64+4*i}:{67+4*i}], v{8+i}, s[24:27], s40 offen{NT}")
    stamp()
    A("  s_barrier")
    A("  s_cmp_lg_u32 s69, 0")
    A("  s_cbranch_scc1 L_zeroq")
    A("L_zeroq_done:")
    for it in range(2):
        A(f"  v_sub_u32 v14, s{42+it}, v122")
        A(f"  v_mad_i32_i24 v14, v121, s{44+it}, v14")
        for r in range(4):
            A(f"  v_cmp_lt_i32 s[{50+8*it+2*r}:{51+8*it+2*r}], {r}, v14")
    def qk(it):
        kb = 32 + 16 * it
        sb = 104 + 4 * it
        if kmode == "std":
            for i in range(4):
                c = "0" if i == 0 else f"v[{sb}:{sb+3}]"
                A(f"  v_mfma_f32_16x16x32_bf16 v[{sb}:{sb+3}], v[{kb+4*i}:{kb+4*i+3}], v[{16+4*i}:{19+4*i}], {c}")
            A("  s_nop 7")
        else:
            tb = [20, 24, 28, 112]
            for i in range(4):
                A(f"  v_mfma_f32_16x16x32_bf16 v[{tb[i]}:{tb[i]+3}], v[{kb+4*i}:{kb+4*i+3}], v[16:19], 0")
            A("  s_nop 4")
            for k in range(4):
                for i in range(4):
                    q = f"quad_perm:[{k},{k},{k},{k}] row_mask:0xf bank_mask:0xf"
                    if k == 0:
                        A(f"  v_mov_b32_dpp v{sb+i}, v{tb[i]} {q}")
                    else:
                        A(f"  v_add_f32_dpp v{sb+i}, v{tb[i]+k}, v{sb+i} {q}")
        for r in range(4):
            A(f"  v_cndmask_b32 v{sb+r}, v127, v{sb+r}, s[{50+8*it+2*r}:{51+8*it+2*r}]")
    A("  s_cmp_lg_u32 s66, 0")
    A("  s_cbranch_scc0 L_one")
    A("  s_waitcnt vmcnt(8)")
    qk(1)
    A("  v_max3_f32 v126, v108, v109, v126")
    A("  v_max3_f32 v126, v110, v111, v126")
    A("  s_branch L_common")
    A("L_one:")
    A("  s_waitcnt vmcnt(4)")
    A("L_common:")
    stamp()
    qk(0)
    A("  v_max3_f32 v126, v104, v105, v126")
    A("  v_max3_f32 v126, v106, v107, v126")
    A("  s_mov_b32 exec_lo, 0x11111111")
    A("  s_mov_b32 exec_hi, 0x11111111")
    A(f"  ds_max_f32 v125, v126 offset:{LDS_MAX}")
    A("  s_mov_b64 exec, -1")
    A("  s_waitcnt lgkmcnt(0)")
    A("  s_barrier")
    A(f"  ds_read_b128 v[116:119], v124 offset:{LDS_MAX}")
    A("  v_mov_b32 v120, 0                  ; l")
    A("  s_waitcnt lgkmcnt(0)")
    stamp()
    A("  v_max3_f32 v126, v116, v117, v118")
    A("  v_max_f32 v126, v126, v119")
    A("  v_mul_f32 v126, s68, v126          ; M*c")
    def pcalc(it):
        kb = 32 + 16 * it
        sb = 104 + 4 * it
        for r in range(4):
            A(f"  v_fma_f32 v{sb+r}, v{sb+r}, s68, -v126")
        for r in range(4):
            A(f"  v_exp_f32 v{sb+r}, v{sb+r}")
        A("  s_nop 0")
        for r in range(4):
            A(f"  v_cvt_pk_bf16_f32 v{kb+8+r}, v{sb+r}, v{sb+r}")
            A(f"  v_add_f32 v120, v120, v{sb+r}")
        for r in range(4):
            A(f"  v_and_b32 v{kb+2*r}, v{kb+8+r}, v12")
            A(f"  v_and_b32 v{kb+2*r+1}, v{kb+8+r}, v13")
    def pv(it, base):
        kb = 32 + 16 * it
        vb = 64 + 16 * it
        for i in range(4):
            A(f"  s_waitcnt vmcnt({base+3-i})")
            A(f"  v_mfma_f32_16x16x16_bf16 v[96:99], v[{kb+2*i}:{kb+2*i+1}], v[{vb+4*i}:{vb+4*i+1}], v[96:99]")
            A(f"  v_mfma_f32_16x16x16_bf16 v[100:103], v[{kb+2*i}:{kb+2*i+1}], v[{vb+4*i+2}:{vb+4*i+3}], v[100:103]")
    pcalc(0)
    A("  s_cmp_lg_u32 s66, 0")
    A("  s_cbranch_scc0 L_skip1")
    pcalc(1)
    A("  s_nop 0")
    pv(1, 4)
    A("L_skip1:")
    A("  v_mov_b32 v14, v120")
    A("  s_nop 1")
    A("  v_permlane16_swap_b32 v120, v14")
    A("  s_nop 1")
    A("  v_add_f32 v120, v120, v14")
    A("  v_mov_b32 v14, v120")
    A("  s_nop 1")
    A("  v_permlane32_swap_b32 v120, v14")
    A("  s_nop 1")
    A("  v_add_f32 v120, v120, v14")
    A("  s_lshl_b32 s46, s28, 2")
    A("  v_lshl_add_u32 v14, v124, 2, s46    ; h*64 + w*4")
    A("  s_mov_b64 exec, 0x1111")
    A(f"  ds_write_b32 v14, v120 offset:{LDS_L}")
    A("  s_mov_b64 exec, -1")
    A("  s_lshl_b32 s46, s28, 11")
    A("  v_add_u32 v123, s46, v123")
    pv(0, 0)
    stamp()
    A("  s_nop 7")
    A("  ds_write_b128 v123, v[96:99]")
    A("  ds_write_b128 v123, v[100:103] offset:1024")
    A("  s_waitcnt lgkmcnt(0)")
    A("  s_barrier")
    stamp()
    A("  s_lshl_b32 s46, s29, 4")
    A("  s_add_u32 s47, s46, s30")
    A("  s_lshl_b32 s47, s47, 12")
    A("  s_lshl_b32 s46, s46, 12")
    A("  v_lshlrev_b32 v14, 3, v0           ; 8t")
    A("  s_cmp_gt_u32 s28, 4")
    A("  s_cbranch_scc1 L_pubdone")
    A("  s_cmp_eq_u32 s28, 4")
    A("  s_cbranch_scc1 L_publ")
    for w in range(16):
        A(f"  ds_read_b64 v[{32+2*w}:{33+2*w}], v14 offset:{w*2048}")
    A("  v_add_u32 v15, s47, v14")
    for w in range(1, 16):
        A(f"  s_waitcnt lgkmcnt({15-w})")
        A(f"  v_pk_add_f32 v[32:33], v[32:33], v[{32+2*w}:{33+2*w}]")
    A("  global_store_dwordx2 v15, v[32:33], s[18:19] sc1")
    A("  s_branch L_pubdone")
    A("L_publ:")
    A("  v_lshlrev_b32 v15, 6, v1           ; lane*64")
    A("  v_lshlrev_b32 v16, 4, v1           ; lane*16")
    A("  s_mov_b64 exec, 0xf")
    for k in range(4):
        A(f"  ds_read_b128 v[{32+4*k}:{35+4*k}], v15 offset:{LDS_L+16*k}")
    A(f"  ds_read_b128 v[48:51], v16 offset:{LDS_MAX}")
    A("  v_lshl_add_u32 v15, v1, 3, s47")
    A("  s_waitcnt lgkmcnt(0)")
    A("  v_max3_f32 v52, v48, v49, v50")
    A("  v_max_f32 v52, v52, v51")
    A("  v_mul_f32 v52, s68, v52")
    A("  v_mov_b32 v53, v32")
    for k in range(1, 16):
        A(f"  v_add_f32 v53, v53, v{32+k}")
    A("  global_store_dwordx2 v15, v[52:53], s[18:19] offset:2048 sc1")
    A("  s_mov_b64 exec, -1")
    A("L_pubdone:")
    A("  s_waitcnt vmcnt(0)")
    A("  s_barrier")
    stamp()
    A("  s_cmp_lg_u32 s28, 0")
    A("  s_cbranch_scc1 L_noatom")
    A("  s_lshl_b32 s48, s29, 2")
    A("  v_mov_b32 v15, s48")
    A("  v_mov_b32 v16, 1")
    A("  s_mov_b64 exec, 1")
    A("  global_atomic_add v17, v15, v16, s[16:17] sc0")
    A("  v_mov_b32 v18, 0")
    A("  s_waitcnt vmcnt(0)")
    A(f"  ds_write_b32 v18, v17 offset:{LDS_FLAG}")
    A("  s_mov_b64 exec, -1")
    A("  s_waitcnt lgkmcnt(0)")
    A("L_noatom:")
    A("  s_barrier")
    A("  v_mov_b32 v18, 0")
    A(f"  ds_read_b32 v17, v18 offset:{LDS_FLAG}")
    A("  s_waitcnt lgkmcnt(0)")
    stamp()
    A("  v_readfirstlane_b32 s48, v17")
    A("  s_cmp_lg_u32 s48, 15")
    A("  s_cbranch_scc1 L_fin")
    A("  s_cmp_gt_u32 s28, 3")
    A("  s_cbranch_scc1 L_fin")
    A("  v_add_u32 v15, s46, v14")
    A("  v_bfe_u32 v16, v0, 5, 2            ; h = (t>>5)&3")
    A("  v_lshl_add_u32 v17, v16, 3, s46")
    A("  v_add_u32 v17, 0x800, v17")
    for s in range(16):
        A(f"  global_load_dwordx2 v[{64+2*s}:{65+2*s}], v17, s[18:19] sc1")
        A(f"  global_load_dwordx2 v[{32+2*s}:{33+2*s}], v15, s[18:19] sc1")
        if s < 15:
            A("  v_add_u32 v15, 0x1000, v15")
            A("  v_add_u32 v17, 0x1000, v17")
    A("  v_lshrrev_b32 v18, 1, v16")
    A("  v_lshlrev_b32 v18, 13, v18         ; b*8192")
    A("  v_and_b32 v19, 1, v16")
    A("  v_lshl_add_u32 v18, v19, 8, v18")
    A("  s_lshl_b32 s48, s29, 9")
    A("  v_add_u32 v18, s48, v18")
    A("  v_bfe_u32 v19, v0, 1, 4")
    A("  v_lshl_add_u32 v18, v19, 4, v18    ; + c*16")
    A("  v_bfe_u32 v19, v0, 7, 1")
    A("  v_lshl_add_u32 v18, v19, 3, v18    ; + plane*8")
    A("  v_and_b32 v19, 1, v0")
    A("  v_lshl_add_u32 v18, v19, 2, v18    ; + (t&1)*4")
    A("  s_waitcnt vmcnt(0)")
    A("  v_max3_f32 v20, v64, v66, v68")
    for s in range(3, 15, 2):
        A(f"  v_max3_f32 v20, v20, v{64+2*s}, v{66+2*s}")
    A("  v_max_f32 v20, v20, v94")
    for s in range(16):
        A(f"  v_sub_f32 v{64+2*s}, v{64+2*s}, v20")
    for s in range(16):
        A(f"  v_exp_f32 v{64+2*s}, v{64+2*s}")
    A("  v_mov_b32 v21, 0")
    A("  v_mov_b32 v22, 0")
    A("  v_mov_b32 v23, 0")
    for s in range(16):
        A(f"  v_fmac_f32 v21, v{64+2*s}, v{65+2*s}")
        A(f"  v_fmac_f32 v22, v{64+2*s}, v{32+2*s}")
        A(f"  v_fmac_f32 v23, v{64+2*s}, v{33+2*s}")
    A("  v_rcp_f32 v21, v21")
    A("  s_nop 0")
    A("  v_mul_f32 v22, v22, v21")
    A("  v_mul_f32 v23, v23, v21")
    A("  v_cvt_pk_bf16_f32 v22, v22, v23")
    A("  global_store_dword v18, v22, s[14:15]")
    A("L_fin:")
    if stamps:
        A("  s_waitcnt vmcnt(0)")
        stamp()
        n = nstamp[0]
        A("  s_lshl_b32 s46, s2, 4")
        A("  s_add_u32 s46, s46, s28")
        A("  s_lshl_b32 s46, s46, 7")
        A("  s_add_u32 s46, s46, 0x200000")
        A("  v_mov_b32 v15, s46")
        A("  s_getreg_b32 s47, hwreg(HW_REG_XCC_ID)")
        A("  s_getreg_b32 s48, hwreg(HW_REG_HW_ID)")
        A("  s_mov_b64 exec, 1")
        for k in range(n):
            A(f"  v_mov_b32 v16, s{70+2*k}")
            A(f"  global_store_dword v15, v16, s[18:19] offset:{4*k}")
        A("  v_mov_b32 v16, s47")
        A("  global_store_dword v15, v16, s[18:19] offset:120")
        A("  v_mov_b32 v16, s48")
        A("  global_store_dword v15, v16, s[18:19] offset:124")
    A("L_end:")
    A("  s_endpgm")
    A("L_zeroq:")
    A("  s_waitcnt vmcnt(4)")
    A("  s_and_b32 s46, s69, 1")
    A("  s_lshr_b32 s47, s69, 1")
    A("  s_mul_i32 s46, s46, 0x00ff00ff")
    A("  s_mul_i32 s47, s47, 0xff00ff00")
    A("  s_or_b32 exec_lo, s46, s47")
    A("  s_mov_b32 exec_hi, exec_lo")
    for i in range(4 * nq):
        A(f"  v_mov_b32 v{16+i}, 0")
    A("  s_mov_b64 exec, -1")
    A("  s_branch L_zeroq_done")
    A('.section .rodata,"a"')
    A(".p2align 6")
    A(f".amdhsa_kernel {NAME}_kernel")
    A("  .amdhsa_next_free_vgpr 128")
    A("  .amdhsa_next_free_sgpr 102")
    A("  .amdhsa_accum_offset 128")
    A("  .amdhsa_group_segment_fixed_size 0")
    A("  .amdhsa_kernarg_size 64")
    A("  .amdhsa_user_sgpr_count 2")
    A("  .amdhsa_user_sgpr_kernarg_segment_ptr 1")
    A("  .amdhsa_system_sgpr_workgroup_id_x 1")
    A(".end_amdhsa_kernel")
    return "\n".join(L) + "\n"

if __name__ == "__main__":
    import argparse
    ap = argparse.ArgumentParser()
    ap.add_argument("-o", required=True)
    ap.add_argument("--kmode", default="std")
    ap.add_argument("--stamps", action="store_true")
    ap.add_argument("--nt", action="store_true")
    a = ap.parse_args()
    open(a.o, "w").write(gen(a.kmode, a.stamps, a.nt))
```

```python
import sys, math, struct

NAME = "standalone__paged_block_table_kv_radixattention__decode"
HDR = open("cdna_kernels/%s.s.ref" % NAME).read().split("; Override launch")[0]

def f32(x):
    return "0x%08x" % struct.unpack("<I", struct.pack("<f", x))[0]

W = 10
KVBYTES = 25165824
SLOT = 2304
PLANE = 1152
LDS_TAB = 0
LDS_DESC = W * SLOT
LDS_MAX = LDS_DESC + 1024
LDS_CNT = LDS_MAX + 64
LDS_L = LDS_MAX + 128
LDS_TOTAL = LDS_L + 160
SPIN = 1 << 17

def gen(stamps=False, nt=True, warm_out=True, spec=True, pollflags="sc1", codepf=True, hmap="hi", pubflags="sc1"):
    L = []
    A = L.append
    C = (128 ** -0.5) * math.log2(math.e)
    NT = " nt" if nt else ""
    VST = 167
    def stamp(k):
        if not stamps: return
        A("  s_memrealtime s[98:99]")
        A("  s_waitcnt lgkmcnt(0)")
        A(f"  v_writelane_b32 v{VST}, s98, {k}")
    def stamp_store():
        if not stamps: return
        A("  s_getreg_b32 s98, hwreg(HW_REG_XCC_ID)")
        A("  s_getreg_b32 s99, hwreg(HW_REG_HW_ID)")
        A(f"  v_writelane_b32 v{VST}, s98, 30")
        A(f"  v_writelane_b32 v{VST}, s99, 31")
        A("  s_lshl_b32 s98, s2, 4")
        A("  s_add_u32 s98, s98, s84")
        A("  s_lshl_b32 s98, s98, 7")
        A("  s_add_u32 s98, s98, 0x200000")
        A("  s_mov_b64 exec, -1")
        A("  v_lshl_add_u32 v14, v1, 2, s98")
        A("  s_mov_b32 exec_hi, 0")
        A(f"  global_store_dword v14, v{VST}, s[18:19]")
    Q = 16
    VM, VL, VNEG, VBSEL, V4G, VAMAX, VH16, VSLOT = 20, 21, 22, 23, 24, 25, 26, 27
    O = 28
    S = 36
    D = 52
    Y = 68
    X = 100
    SK = 20
    SV = 36
    SM = 52
    A(HDR.rstrip())
    A(f"; @launch grid=(256,1,1) block=({64*(W+1)},1,1) lds={LDS_TOTAL}")
    A('.amdgcn_target "amdgcn-amd-amdhsa--gfx950"')
    A(".text")
    A(f".globl {NAME}_kernel")
    A(".p2align 12")
    A(".p2align 8")
    A(f".type {NAME}_kernel,@function")
    A(f"{NAME}_kernel:")
    A("  s_load_dwordx16 s[4:19], s[0:1], 0")
    A("  s_getpc_b64 s[82:83]")
    A("  v_lshrrev_b32 v14, 6, v0")
    A("  v_and_b32 v1, 63, v0")
    A("  v_readfirstlane_b32 s84, v14")
    A("  s_cmp_ge_u32 s2, 256")
    A("  s_cbranch_scc1 L_end")
    if stamps:
        A(f"  v_mov_b32 v{VST}, 0")
        A("  s_memrealtime s[98:99]")
    if hmap == "hi":
        A("  s_lshr_b32 s85, s2, 4")
        A("  s_and_b32 s86, s2, 15              ; split")
    else:
        A("  s_and_b32 s85, s2, 15")
        A("  s_lshr_b32 s86, s2, 4              ; split")
    A("  s_lshl_b32 s91, s85, 8             ; kvh*256")
    A("  s_lshl_b32 s81, s85, 4")
    A("  s_add_u32 s81, s81, s86")
    A("  s_lshl_b32 s81, s81, 12")
    A(f"  s_cmp_eq_u32 s84, {W}")
    A("  s_cbranch_scc1 L_helper")
    A("  v_lshrrev_b32 v2, 4, v1            ; g")
    A("  v_and_b32 v3, 15, v1               ; n")
    A("  v_and_b32 v14, 3, v1               ; u")
    A("  v_lshrrev_b32 v15, 2, v3           ; t = h")
    A("  v_lshlrev_b32 v4, 6, v2")
    A("  v_lshl_add_u32 v4, v14, 4, v4      ; 64g + 16u")
    A(f"  v_lshrrev_b32 v{VBSEL}, 3, v3         ; bsel")
    A("  v_and_b32 v12, 1, v15              ; hh")
    A("  v_lshl_add_u32 v12, v12, 8, v4")
    A(f"  v_lshl_add_u32 v12, v{VBSEL}, 13, v12")
    A("  s_lshl_b32 s90, s85, 9")
    A("  v_add_u32 v12, s90, v12            ; q offset")
    A("  v_lshl_add_u32 v4, v15, 14, v4     ; voffK0 = 4t*4096 + 64g + 16u")
    A("  v_add_u32 v5, 0x1000, v4")
    A("  v_add_u32 v6, 0x2000, v4")
    A("  v_add_u32 v7, 0x3000, v4")
    A("  s_mul_i32 s92, s86, 303")
    A("  s_add_u32 s93, s92, 303")
    A("  s_lshr_b32 s92, s92, 4             ; lo")
    A("  s_lshr_b32 s93, s93, 4             ; hi")
    A("  s_add_u32 s92, s92, s84            ; i0")
    for m in range(2):
        if m:
            A(f"  s_add_u32 s92, s92, {W}")
        A("  s_add_u32 s94, s92, 27")
        A("  s_cmp_lt_u32 s92, 229")
        A("  s_cselect_b32 s94, s92, s94")
        A("  s_lshl_b32 s94, s94, 16")
        A("  s_add_u32 s94, s94, s91")
        A("  s_cmp_lt_u32 s92, s93")
        if not spec:
            A("  s_cmp_lt_u32 s92, 0")
        A(f"  s_cselect_b32 s{88+m}, s94, -1")
        A(f"  s_cselect_b32 s{SK+4*m+2}, {KVBYTES}, 0")
        A(f"  s_cselect_b32 s{SV+4*m+2}, {KVBYTES}, 0")
        A(f"  s_mov_b32 s{SK+4*m+3}, 0x20000")
        A(f"  s_mov_b32 s{SV+4*m+3}, 0x20000")
    A("  s_waitcnt lgkmcnt(0)")
    if stamps:
        A(f"  v_writelane_b32 v{VST}, s98, 0")
    stamp(1)
    A(f"  s_mov_b64 s[{SK}:{SK+1}], s[6:7]")
    A(f"  global_load_dwordx4 v[{Q}:{Q+3}], v12, s[4:5]")
    for m in range(2):
        if m:
            A(f"  s_mov_b64 s[{SK+4}:{SK+5}], s[6:7]")
        for i in range(4):
            r = X + 16 * m + 4 * i
            A(f"  buffer_load_dwordx4 v[{r}:{r+3}], v{4+i}, s[{SK+4*m}:{SK+4*m+3}], s{88+m} offen{NT}")
    A("  s_branch L_comp2")

    A("L_helper:")
    A("  s_setprio 3")
    if codepf:
        A("  v_lshlrev_b32 v2, 6, v1")
        A("  global_load_dword v3, v2, s[82:83]")
    A("  v_lshlrev_b32 v4, 4, v1            ; lane*16")
    A("  v_add_u32 v5, s81, v4")
    for i in range(4):
        A(f"  v_mov_b32 v{8+i}, -1")
    A("  v_lshlrev_b32 v6, 2, v1")
    A(f"  v_mov_b32 v7, {f32(-1e28)}")
    A("  v_writelane_b32 v7, 0, 16          ; counter = 0")
    A("  s_mov_b64 exec, 0x1ffff")
    A(f"  ds_write_b32 v6, v7 offset:{LDS_MAX}")
    A("  s_mov_b64 exec, -1")
    A("  s_waitcnt lgkmcnt(0)")
    if stamps:
        A(f"  v_writelane_b32 v{VST}, s98, 0")
    stamp(1)
    A("  global_load_dwordx4 v[12:15], v4, s[10:11]")
    A("  global_load_dwordx4 v[16:19], v4, s[10:11] offset:1024")
    A("  s_load_dwordx2 s[32:33], s[12:13], 0")
    A("  global_store_dwordx4 v5, v[8:11], s[18:19] sc1")
    A("  global_store_dwordx4 v5, v[8:11], s[18:19] offset:1024 sc1")
    A("  s_mov_b64 exec, 3")
    A("  global_store_dwordx4 v5, v[8:11], s[18:19] offset:2048 sc1")
    A("  s_mov_b64 exec, -1")
    A("  s_mov_b32 s69, 0")
    A("  s_lshl_b32 s90, s85, 4")
    A("  v_mov_b32 v6, s90")
    A("  v_mov_b32 v7, 1")
    A("  s_waitcnt lgkmcnt(0)")
    for b in range(2):
        s = 32 + b
        A(f"  s_cmp_lt_i32 s{s}, 1")
        A(f"  s_cselect_b32 s34, {1<<b}, 0")
        A(f"  s_cselect_b32 s{s}, 4096, s{s}")
        A(f"  s_or_b32 s69, s69, s34")
        A(f"  s_min_i32 s{s}, s{s}, 4096")
        A(f"  s_add_u32 s{38+b}, s{s}, 15")
        A(f"  s_lshr_b32 s{38+b}, s{38+b}, 4     ; n{b}")
    A("  s_waitcnt vmcnt(3)")
    stamp(2)
    A(f"  ds_write_b128 v4, v[12:15] offset:{LDS_TAB}")
    A(f"  ds_write_b128 v4, v[16:19] offset:{LDS_TAB+1024}")
    A("  v_cmp_ne_u64 s[34:35], v[12:13], v[16:17]")
    A("  v_cmp_ne_u64 s[36:37], v[14:15], v[18:19]")
    A("  s_nop 1")
    A("  s_or_b64 s[34:35], s[34:35], s[36:37]")
    A("  s_ff1_i32_b64 s34, s[34:35]")
    A("  s_lshl_b32 s34, s34, 2")
    A("  s_min_u32 s34, s34, s38")
    A("  s_min_u32 s34, s34, s39            ; P")
    A("  s_add_u32 s35, s38, s39")
    A("  s_sub_u32 s35, s35, s34            ; T")
    A("  s_mul_i32 s36, s35, s86")
    A("  s_add_u32 s37, s36, s35")
    A("  s_lshr_b32 s36, s36, 4             ; lo")
    A("  s_lshr_b32 s37, s37, 4             ; hi")
    A("  s_sub_u32 s40, s37, s36            ; cnt")
    A(f"  s_cmp_gt_u32 s40, {2*W}")
    A("  s_cselect_b32 s41, 4, 0")
    A("  s_or_b32 s69, s69, s41             ; flags")
    A("  s_sub_u32 s41, s34, s38            ; P - n0")
    A("  v_add_u32 v20, s36, v1             ; i")
    A("  v_cmp_gt_u32 s[42:43], s38, v20    ; isA: i < n0")
    A("  v_cmp_gt_u32 s[44:45], s34, v20    ; i < P")
    A("  v_cmp_gt_u32 s[46:47], s40, v1     ; valid")
    A("  v_add_u32 v21, s41, v20")
    A("  v_add_u32 v22, 0x100, v21")
    A("  v_cndmask_b32 v21, v21, v20, s[42:43]   ; j")
    A("  v_cndmask_b32 v22, v22, v20, s[42:43]   ; e")
    A("  v_and_b32 v22, 0x1ff, v22")
    A("  v_lshlrev_b32 v22, 2, v22")
    A("  s_waitcnt lgkmcnt(0)")
    A(f"  ds_read_b32 v22, v22 offset:{LDS_TAB}")
    A("  s_orn2_b64 s[44:45], s[44:45], s[42:43]   ; serves b1")
    A("  s_and_b64 s[42:43], s[42:43], s[46:47]")
    A("  s_and_b64 s[44:45], s[44:45], s[46:47]")
    A("  v_mov_b32 v23, s32")
    A("  v_mov_b32 v24, s33")
    A("  v_cndmask_b32 v23, 0, v23, s[42:43]     ; limA")
    A("  v_cndmask_b32 v24, 0, v24, s[44:45]     ; limB")
    A("  v_lshlrev_b32 v21, 4, v21")
    A("  v_sub_u32 v30, v24, v23")
    A("  v_sub_u32 v29, v23, v21            ; d1 = limA-16j")
    A("  v_mov_b32 v31, s69")
    A("  s_waitcnt lgkmcnt(0)")
    A("  v_lshl_add_u32 v22, v22, 16, s91")
    A("  v_cndmask_b32 v28, -1, v22, s[46:47]    ; soff")
    A(f"  ds_write_b128 v4, v[28:31] offset:{LDS_DESC}")
    stamp(3)
    A("  s_waitcnt vmcnt(0) lgkmcnt(0)")
    A("  s_mov_b64 exec, 1")
    A("  global_atomic_add v6, v7, s[16:17]")
    A("  s_mov_b64 exec, -1")
    stamp(4)
    A("  s_barrier                          ; #0")
    A("  s_branch L_helper2")

    A("L_comp2:")
    A("  v_lshlrev_b32 v8, 14, v2")
    A("  v_lshl_add_u32 v8, v3, 4, v8       ; voffV0 = 4g*4096 + 16n")
    A("  v_add_u32 v9, 0x1000, v8")
    A("  v_add_u32 v10, 0x2000, v8")
    A("  v_add_u32 v11, 0x3000, v8")
    A(f"  s_mov_b64 s[{SV}:{SV+1}], s[8:9]")
    A(f"  s_mov_b64 s[{SV+4}:{SV+5}], s[8:9]")
    A("  s_lshl_b32 s90, s84, 4")
    A(f"  v_mov_b32 v{Y+16}, s90")
    A("  v_and_b32 v13, 1, v14")
    A("  v_lshlrev_b32 v13, 4, v13")
    A(f"  v_mov_b32 v{Y+1}, 0xffff")
    A(f"  v_lshlrev_b32 v13, v13, v{Y+1}       ; 0xffff << 16*(u&1)")
    A("  v_cmp_gt_u32 vcc, 2, v14")
    A(f"  v_lshlrev_b32 v{V4G}, 2, v2          ; 4g")
    A(f"  v_lshlrev_b32 v{VH16}, 4, v15        ; h*16")
    A("  v_cndmask_b32 v12, 0, v13, vcc     ; mask0")
    A("  v_xor_b32 v13, v12, v13            ; mask1")
    A(f"  v_add_u32 v{VAMAX}, v{VH16}, v{V4G}      ; h*16+g*4")
    A(f"  v_mov_b32 v{VM}, {f32(-1e28)}")
    A(f"  v_mov_b32 v{VNEG}, {f32(-1e30)}")
    A(f"  v_mov_b32 v{VL}, 0")
    for i in range(8):
        A(f"  v_mov_b32 v{O+i}, 0")
    A(f"  s_mul_i32 s90, s84, {SLOT}")
    A(f"  v_lshl_add_u32 v{VSLOT}, v1, 4, s90")
    A(f"  s_mov_b32 s87, {f32(C)}")
    A("  v_mov_b32 v2, 1")
    A("  v_mov_b32 v3, 0")
    stamp(2)
    A("  s_barrier                          ; #0")
    A(f"  ds_read_b128 v[{D}:{D+3}], v{Y+16} offset:{LDS_DESC}")
    A(f"  ds_read_b128 v[{D+4}:{D+7}], v{Y+16} offset:{LDS_DESC+16*W}")
    stamp(3)

    def masks(m, slot):
        A(f"  v_sub_u32 v{Y+17}, v{D+4*m+1}, v{V4G}")
        A(f"  v_mad_i32_i24 v{Y+17}, v{VBSEL}, v{D+4*m+2}, v{Y+17}")
        for r in range(4):
            A(f"  v_cmp_lt_i32 s[{SM+8*slot+2*r}:{SM+8*slot+2*r+1}], {r}, v{Y+17}")
    def qk_mfma(kb):
        for i in range(4):
            A(f"  v_mfma_f32_16x16x32_bf16 v[{Y+4*i}:{Y+4*i+3}], v[{kb+4*i}:{kb+4*i+3}], v[{Q}:{Q+3}], 0")
    def qk_rest(m, slot):
        sb = S + 4 * m
        for k in range(4):
            for i in range(4):
                q = f"quad_perm:[{k},{k},{k},{k}] row_mask:0xf bank_mask:0xf"
                if k == 0:
                    A(f"  v_mov_b32_dpp v{sb+i}, v{Y+4*i} {q}")
                else:
                    A(f"  v_add_f32_dpp v{sb+i}, v{Y+4*i+k}, v{sb+i} {q}")
        for r in range(4):
            A(f"  v_cndmask_b32 v{sb+r}, v{VNEG}, v{sb+r}, s[{SM+8*slot+2*r}:{SM+8*slot+2*r+1}]")
        A(f"  v_max3_f32 v{VM}, v{sb}, v{sb+1}, v{VM}")
        A(f"  v_max3_f32 v{VM}, v{sb+2}, v{sb+3}, v{VM}")
    def arrive():
        A("  s_mov_b32 exec_lo, 0x11111111")
        A("  s_mov_b32 exec_hi, 0x11111111")
        A(f"  ds_max_f32 v{VAMAX}, v{VM} offset:{LDS_MAX}")
        A("  s_mov_b64 exec, 1")
        A(f"  ds_add_u32 v3, v2 offset:{LDS_CNT}")
        A("  s_mov_b64 exec, -1")
    def waitmax(tag):
        A(f"L_wm{tag}:")
        A(f"  ds_read_b32 v{Y+4}, v3 offset:{LDS_CNT}")
        A(f"  ds_read_b128 v[{Y}:{Y+3}], v{VH16} offset:{LDS_MAX}")
        A("  s_waitcnt lgkmcnt(0)")
        A(f"  v_cmp_ne_u32 vcc, {W}, v{Y+4}")
        A(f"  s_cbranch_vccnz L_wm{tag}")
        A(f"  v_max3_f32 v{VM}, v{Y}, v{Y+1}, v{Y+2}")
        A(f"  v_max_f32 v{VM}, v{VM}, v{Y+3}")
        A(f"  v_mul_f32 v{VM}, s87, v{VM}          ; M*c")
    def pcalc(m):
        sb = S + 4 * m
        ab = Y + 8 * m
        for r in range(4):
            A(f"  v_fma_f32 v{sb+r}, v{sb+r}, s87, -v{VM}")
        for r in range(4):
            A(f"  v_exp_f32 v{sb+r}, v{sb+r}")
        A("  s_nop 0")
        for r in range(4):
            A(f"  v_add_f32 v{VL}, v{VL}, v{sb+r}")
            A(f"  v_cvt_pk_bf16_f32 v{sb+r}, v{sb+r}, v{sb+r}")
        for r in range(4):
            A(f"  v_and_b32 v{ab+2*r}, v{sb+r}, v12")
            A(f"  v_and_b32 v{ab+2*r+1}, v{sb+r}, v13")
    def lwrite():
        A(f"  v_mov_b32 v14, v{VL}")
        A("  v_mul_u32_u24 v15, 40, v15         ; h*40")
        A("  s_lshl_b32 s90, s84, 2")
        A(f"  v_permlane16_swap_b32 v{VL}, v14")
        A(f"  v_add_f32 v{VL}, v{VL}, v14")
        A(f"  v_mov_b32 v14, v{VL}")
        A("  v_add_u32 v15, s90, v15")
        A("  s_nop 0")
        A(f"  v_permlane32_swap_b32 v{VL}, v14")
        A(f"  v_add_f32 v{VL}, v{VL}, v14")
        A("  s_mov_b64 exec, 0x1111")
        A(f"  ds_write_b32 v15, v{VL} offset:{LDS_L}")
        A("  s_mov_b64 exec, -1")
        A("  v_bfe_u32 v14, v1, 1, 1            ; plane")
        A(f"  v_mul_u32_u24 v14, {PLANE}, v14")
        A("  v_lshrrev_b32 v15, 2, v1")
        A("  v_lshl_add_u32 v14, v15, 4, v14")
        A("  v_and_b32 v15, 1, v1")
        A("  v_lshl_add_u32 v14, v15, 3, v14")
        A("  s_lshl_b32 s90, s84, 8")
        A("  v_add_u32 v14, s90, v14")
        A("  s_lshl_b32 s90, s84, 9")
        A("  s_add_u32 s90, s90, s81")
        A("  v_lshl_add_u32 v15, v1, 3, s90")
        A("  v_mul_u32_u24 v12, 40, v1")
        A("  v_lshlrev_b32 v13, 4, v1")
    def pv(m, vb, base):
        ab = Y + 8 * m
        for i in range(4):
            A(f"  s_waitcnt vmcnt({base+3-i})")
            A(f"  v_mfma_f32_16x16x16_bf16 v[{O}:{O+3}], v[{ab+2*i}:{ab+2*i+1}], v[{vb+4*i}:{vb+4*i+1}], v[{O}:{O+3}]")
            A(f"  v_mfma_f32_16x16x16_bf16 v[{O+4}:{O+7}], v[{ab+2*i}:{ab+2*i+1}], v[{vb+4*i+2}:{vb+4*i+3}], v[{O+4}:{O+7}]")

    A("  s_waitcnt vmcnt(4)")
    qk_mfma(X)
    A("  s_waitcnt lgkmcnt(0)")
    A(f"  v_xor_b32 v{Y+18}, s88, v{D}")
    A(f"  v_xor_b32 v{Y+19}, s89, v{D+4}")
    A(f"  v_or3_b32 v{Y+18}, v{Y+18}, v{Y+19}, v{D+3}")
    A(f"  v_cmp_ne_u32 vcc, 0, v{Y+18}")
    A("  s_cbranch_vccnz L_general")
    masks(0, 0)
    qk_rest(0, 0)
    A("  s_waitcnt vmcnt(0)")
    stamp(4)
    qk_mfma(X + 16)
    masks(1, 1)
    qk_rest(1, 1)
    arrive()
    stamp(5)
    for m in (0, 1):
        for i in range(4):
            r = X + 32 + 16 * m + 4 * i
            A(f"  buffer_load_dwordx4 v[{r}:{r+3}], v{8+i}, s[{SV+4*m}:{SV+4*m+3}], s{88+m} offen{NT}")
    stamp(6)
    waitmax("f")
    stamp(7)
    pcalc(0)
    pcalc(1)
    lwrite()
    stamp(8)
    pv(0, X + 32, 4)
    pv(1, X + 48, 0)
    A("L_tail:")
    stamp(9)
    A("  s_cmp_gt_u32 s84, 3")
    A("  s_nop 5")
    A(f"  ds_write_b128 v{VSLOT}, v[{O}:{O+3}]")
    A(f"  ds_write_b128 v{VSLOT}, v[{O+4}:{O+7}] offset:{PLANE}")
    A("  s_waitcnt lgkmcnt(0)")
    A("  s_barrier                          ; #2")
    A("  s_cbranch_scc1 L_notred")
    for w in range(W):
        A(f"  ds_read_b64 v[{Y+2*w}:{Y+2*w+1}], v14 offset:{w*SLOT}")
    for w in range(1, W):
        A(f"  s_waitcnt lgkmcnt({W-1-w})")
        A(f"  v_pk_add_f32 v[{Y}:{Y+1}], v[{Y}:{Y+1}], v[{Y+2*w}:{Y+2*w+1}]")
    A(f"  global_store_dwordx2 v15, v[{Y}:{Y+1}], s[18:19] {pubflags}")
    A("L_fin:")
    stamp(10)
    stamp_store()
    A("L_end:")
    A("  s_endpgm")
    A("L_notred:")
    A("  s_cmp_lg_u32 s84, 4")
    A("  s_cbranch_scc1 L_fin")
    A("  s_mov_b64 exec, 0xf")
    A(f"  ds_read_b128 v[{Y}:{Y+3}], v13 offset:{LDS_MAX}")
    for k in range(5):
        A(f"  ds_read_b64 v[{Y+4+2*k}:{Y+5+2*k}], v12 offset:{LDS_L+8*k}")
    A("  s_waitcnt lgkmcnt(3)")
    A(f"  v_max3_f32 v{Y}, v{Y}, v{Y+1}, v{Y+2}")
    A(f"  v_pk_add_f32 v[{Y+4}:{Y+5}], v[{Y+4}:{Y+5}], v[{Y+6}:{Y+7}]")
    A(f"  v_max_f32 v{Y}, v{Y}, v{Y+3}")
    A("  s_waitcnt lgkmcnt(1)")
    A(f"  v_pk_add_f32 v[{Y+8}:{Y+9}], v[{Y+8}:{Y+9}], v[{Y+10}:{Y+11}]")
    A(f"  v_mul_f32 v{Y}, s87, v{Y}")
    A("  s_waitcnt lgkmcnt(0)")
    A(f"  v_pk_add_f32 v[{Y+4}:{Y+5}], v[{Y+4}:{Y+5}], v[{Y+12}:{Y+13}]")
    A(f"  v_pk_add_f32 v[{Y+4}:{Y+5}], v[{Y+4}:{Y+5}], v[{Y+8}:{Y+9}]")
    A(f"  v_add_f32 v{Y+1}, v{Y+4}, v{Y+5}")
    A(f"  global_store_dwordx2 v15, v[{Y}:{Y+1}], s[18:19] {pubflags}")
    A("  s_branch L_fin")

    A("L_helper2:")
    stamp(5)
    A("  s_lshr_b32 s92, s86, 2             ; h")
    A("  s_and_b32 s93, s86, 3              ; dq")
    A("  s_lshr_b32 s94, s92, 1")
    A("  s_lshl_b32 s94, s94, 13")
    A("  s_and_b32 s95, s92, 1")
    A("  s_lshl_b32 s95, s95, 8")
    A("  s_add_u32 s94, s94, s95")
    A("  s_lshl_b32 s95, s85, 9")
    A("  s_add_u32 s94, s94, s95")
    A("  s_lshl_b32 s95, s93, 6")
    A("  s_add_u32 s94, s94, s95")
    A("  v_and_b32 v8, 7, v1                ; q")
    A("  v_lshrrev_b32 v9, 4, v1            ; rho")
    A("  v_lshlrev_b32 v9, 1, v9")
    A("  v_lshl_add_u32 v9, v8, 3, v9")
    A("  v_add_u32 v9, s94, v9")
    A("  v_lshrrev_b32 v10, 3, v1           ; pp")
    A("  s_lshl_b32 s94, s85, 16")
    A("  v_lshl_add_u32 v10, v10, 12, s94")
    A("  s_lshl_b32 s95, s92, 3")
    A("  v_add_u32 v11, s95, v10")
    A("  v_add_u32 v12, 0x8000, v11")
    A("  s_lshl_b32 s95, s86, 7             ; h*512 + dq*128")
    A("  v_lshl_add_u32 v10, v8, 4, v10")
    A("  v_add_u32 v10, s95, v10")
    A("  v_add_u32 v13, 0x8000, v10")
    if warm_out:
        A("  s_mov_b64 exec, 1")
        A("  global_load_ushort v3, v9, s[14:15]")
        A("  s_mov_b64 exec, -1")
    A(f"  s_mov_b32 s96, {SPIN}")
    stamp(7)
    A("  s_barrier                          ; #2")
    stamp(8)
    A("L_rdy:")
    A("  global_load_dword v16, v6, s[16:17] sc1")
    A("  s_sub_u32 s96, s96, 1")
    A("  s_cbranch_scc1 L_rdy_done")
    A("  s_waitcnt vmcnt(0)")
    A("  v_cmp_ne_u32 vcc, 16, v16")
    A("  s_cbranch_vccnz L_rdy")
    A("L_rdy_done:")
    if stamps:
        A("  s_sub_u32 s96, %d, s96" % SPIN)
        A(f"  v_writelane_b32 v{VST}, s96, 28")
    A(f"  s_mov_b32 s96, {SPIN}")
    stamp(9)
    A("L_o:")
    A(f"  global_load_dwordx2 v[16:17], v11, s[18:19] offset:2048 {pollflags}")
    A(f"  global_load_dwordx2 v[18:19], v12, s[18:19] offset:2048 {pollflags}")
    A(f"  global_load_dwordx4 v[20:23], v10, s[18:19] {pollflags}")
    A(f"  global_load_dwordx4 v[24:27], v13, s[18:19] {pollflags}")
    A("  s_sub_u32 s96, s96, 1")
    A("  s_cbranch_scc1 L_o_done")
    A("  s_waitcnt vmcnt(0)")
    A("  v_max3_u32 v28, v20, v21, v22")
    A("  v_max3_u32 v29, v23, v24, v25")
    A("  v_max3_u32 v30, v16, v17, v18")
    A("  v_max3_u32 v28, v26, v27, v28")
    A("  v_max3_u32 v29, v19, v29, v30")
    A("  v_max_u32 v28, v28, v29")
    A("  v_cmp_eq_u32 vcc, -1, v28")
    A("  s_cbranch_vccnz L_o")
    A("L_o_done:")
    A("  s_waitcnt vmcnt(0)")
    stamp(10)
    A("  v_max_f32 v28, v16, v18")
    A("  s_nop 1")
    A("  v_max_f32_dpp v28, v28, v28 row_ror:8 row_mask:0xf bank_mask:0xf")
    A("  v_mov_b32 v29, v28")
    A("  s_nop 1")
    A("  v_permlane16_swap_b32 v28, v29")
    A("  v_max_f32 v28, v28, v29")
    A("  v_mov_b32 v29, v28")
    A("  s_nop 1")
    A("  v_permlane32_swap_b32 v28, v29")
    A("  v_max_f32 v28, v28, v29")
    A("  v_sub_f32 v16, v16, v28")
    A("  v_sub_f32 v18, v18, v28")
    A("  v_exp_f32 v16, v16")
    A("  v_exp_f32 v18, v18")
    A("  s_nop 0")
    A("  v_mul_f32 v28, v16, v17")
    for k in range(4):
        A(f"  v_mul_f32 v{20+k}, v16, v{20+k}")
    A("  v_fmac_f32 v28, v18, v19")
    for k in range(4):
        A(f"  v_fmac_f32 v{20+k}, v18, v{24+k}")
    A("  v_mov_b32 v29, v28")
    A("  v_permlane16_swap_b32 v20, v21")
    A("  v_permlane16_swap_b32 v22, v23")
    A("  v_permlane16_swap_b32 v28, v29")
    A("  v_add_f32 v20, v20, v21")
    A("  v_add_f32 v22, v22, v23")
    A("  v_add_f32 v28, v28, v29")
    A("  v_mov_b32 v29, v28")
    A("  v_permlane32_swap_b32 v20, v22")
    A("  s_nop 0")
    A("  v_permlane32_swap_b32 v28, v29")
    A("  v_add_f32 v20, v20, v22")
    A("  v_add_f32 v28, v28, v29")
    A("  s_nop 0")
    A("  v_add_f32_dpp v20, v20, v20 row_ror:8 row_mask:0xf bank_mask:0xf")
    A("  v_add_f32_dpp v28, v28, v28 row_ror:8 row_mask:0xf bank_mask:0xf")
    A("  v_rcp_f32 v28, v28")
    A("  s_mov_b32 exec_lo, 0x00ff00ff")
    A("  s_mov_b32 exec_hi, 0x00ff00ff")
    A("  v_mul_f32 v20, v20, v28")
    A("  v_cvt_pk_bf16_f32 v20, v20, v20")
    A("  global_store_short v9, v20, s[14:15]")
    if stamps:
        A("  s_waitcnt vmcnt(0)")
        stamp(11)
        A("  s_sub_u32 s96, %d, s96" % SPIN)
        A(f"  v_writelane_b32 v{VST}, s96, 29")
        stamp_store()
    A("  s_endpgm")

    A("L_general:")
    A(f"  ds_read_b128 v[{D+8}:{D+11}], v{Y+16} offset:{LDS_DESC+32*W}")
    A(f"  ds_read_b128 v[{D+12}:{D+15}], v{Y+16} offset:{LDS_DESC+48*W}")
    A("  s_waitcnt vmcnt(0) lgkmcnt(0)")
    for m in range(4):
        A(f"  v_readfirstlane_b32 s{70+m}, v{D+4*m}")
    A(f"  v_readfirstlane_b32 s74, v{D+3}")
    for m in range(4):
        A(f"  s_mov_b64 s[{SK+4*m}:{SK+4*m+1}], s[6:7]")
        A(f"  s_mov_b64 s[{SV+4*m}:{SV+4*m+1}], s[8:9]")
        A(f"  s_cmp_lg_u32 s{70+m}, -1")
        A(f"  s_cselect_b32 s{SK+4*m+2}, {KVBYTES}, 0")
        A(f"  s_cselect_b32 s{SV+4*m+2}, {KVBYTES}, 0")
        A(f"  s_mov_b32 s{SK+4*m+3}, 0x20000")
        A(f"  s_mov_b32 s{SV+4*m+3}, 0x20000")
    for m in range(4):
        for i in range(4):
            r = X + 16 * m + 4 * i
            A(f"  buffer_load_dwordx4 v[{r}:{r+3}], v{4+i}, s[{SK+4*m}:{SK+4*m+3}], s{70+m} offen{NT}")
    A("  s_and_b32 s75, s74, 1")
    A("  s_bfe_u32 s76, s74, 0x10001")
    A("  s_mul_i32 s75, s75, 0x00ff00ff")
    A("  s_mul_i32 s76, s76, 0xff00ff00")
    A("  s_or_b32 s75, s75, s76")
    A("  s_mov_b32 exec_lo, s75")
    A("  s_mov_b32 exec_hi, s75")
    for i in range(4):
        A(f"  v_mov_b32 v{Q+i}, 0")
    A("  s_mov_b64 exec, -1")
    A("  s_waitcnt vmcnt(0)")
    for m in range(4):
        qk_mfma(X + 16 * m)
        masks(m, 0)
        qk_rest(m, 0)
    arrive()
    for m in range(4):
        for i in range(4):
            r = X + 16 * m + 4 * i
            A(f"  buffer_load_dwordx4 v[{r}:{r+3}], v{8+i}, s[{SV+4*m}:{SV+4*m+3}], s{70+m} offen{NT}")
    waitmax("g")
    for m in range(4):
        pcalc(m)
    lwrite()
    for m in range(4):
        pv(m, X + 16 * m, 12 - 4 * m)
    A("  s_branch L_tail")
    A('.section .rodata,"a"')
    A(".p2align 6")
    A(f".amdhsa_kernel {NAME}_kernel")
    A("  .amdhsa_next_free_vgpr 168")
    A("  .amdhsa_next_free_sgpr 102")
    A("  .amdhsa_accum_offset 168")
    A("  .amdhsa_group_segment_fixed_size 0")
    A("  .amdhsa_kernarg_size 64")
    A("  .amdhsa_user_sgpr_count 2")
    A("  .amdhsa_user_sgpr_kernarg_segment_ptr 1")
    A("  .amdhsa_system_sgpr_workgroup_id_x 1")
    A(".end_amdhsa_kernel")
    return "\n".join(L) + "\n"

if __name__ == "__main__":
    import argparse
    ap = argparse.ArgumentParser()
    ap.add_argument("-o", required=True)
    ap.add_argument("--stamps", action="store_true")
    ap.add_argument("--no-nt", action="store_true")
    ap.add_argument("--no-warm", action="store_true")
    ap.add_argument("--no-spec", action="store_true")
    ap.add_argument("--no-codepf", action="store_true")
    ap.add_argument("--poll", default="sc1")
    ap.add_argument("--pub", default="sc1")
    ap.add_argument("--hmap", default="hi")
    a = ap.parse_args()
    open(a.o, "w").write(gen(a.stamps, not a.no_nt, not a.no_warm, not a.no_spec, a.poll, not a.no_codepf, a.hmap, a.pub))
```

```python
import sys, math, struct

NAME = "standalone__paged_block_table_kv_radixattention__decode"
HDR = open("cdna_kernels/%s.s.ref" % NAME).read().split("; Override launch")[0]

def f32(x):
    return "0x%08x" % struct.unpack("<I", struct.pack("<f", x))[0]

W = 10
KVBYTES = 25165824
SLOT = 2304
PLANE = 1152
LDS_TAB = 0
LDS_DESC = W * SLOT
LDS_MAX = LDS_DESC + 1024
LDS_CNT = LDS_MAX + 64
LDS_L = LDS_MAX + 128
LDS_TOTAL = LDS_L + 160
SPIN = 1 << 17

def gen(stamps=False, nt=True, warm_out=True, spec=True, pollflags="sc1", codepf=True, hmap="hi", pubflags="sc1", dbgstats=False):
    L = []
    A = L.append
    C = (128 ** -0.5) * math.log2(math.e)
    NT = " nt" if nt else ""
    VST = 167
    def stamp(k):
        if not stamps: return
        A("  s_memrealtime s[98:99]")
        A("  s_waitcnt lgkmcnt(0)")
        A(f"  v_writelane_b32 v{VST}, s98, {k}")
    def stamp_store(role="c"):
        if not stamps: return
        if dbgstats:
            for _ in range(8):
                A("  s_sleep 127")
            lst = [(1, 0, True), (2, 0, False), (3, 1, False), (5, 2, False), (6, 4, False), (7, 6, False), (9, 9, False), (10, 10, False)] if role == "c" else [(11, 2, False), (13, 4, False), (14, 10, False), (15, 11, False)]
            A("  s_mov_b64 exec, 1")
            A("  v_mov_b32 v14, 0")
            for word, st, inv in lst:
                A(f"  v_readlane_b32 s98, v{VST}, {st}")
                if inv:
                    A("  s_not_b32 s98, s98")
                A("  s_nop 1")
                A("  v_mov_b32 v15, s98")
                A(f"  global_atomic_umax v14, v15, s[16:17] offset:{4*word}")
            return
        A("  s_getreg_b32 s98, hwreg(HW_REG_XCC_ID)")
        A("  s_getreg_b32 s99, hwreg(HW_REG_HW_ID)")
        A(f"  v_writelane_b32 v{VST}, s98, 30")
        A(f"  v_writelane_b32 v{VST}, s99, 31")
        A("  s_lshl_b32 s98, s2, 4")
        A("  s_add_u32 s98, s98, s84")
        A("  s_lshl_b32 s98, s98, 7")
        A("  s_add_u32 s98, s98, 0x200000")
        A("  s_mov_b64 exec, -1")
        A("  v_lshl_add_u32 v14, v1, 2, s98")
        A("  s_mov_b32 exec_hi, 0")
        A(f"  global_store_dword v14, v{VST}, s[18:19]")
    Q = 16
    VM, VL, VNEG, VBSEL, V4G, VAMAX, VH16, VSLOT = 20, 21, 22, 23, 24, 25, 26, 27
    O = 28
    S = 36
    D = 52
    Y = 68
    X = 100
    SK = 20
    SV = 36
    SM = 52
    A(HDR.rstrip())
    A(f"; @launch grid=(256,1,1) block=({64*(W+1)},1,1) lds={LDS_TOTAL}")
    A('.amdgcn_target "amdgcn-amd-amdhsa--gfx950"')
    A(".text")
    A(f".globl {NAME}_kernel")
    A(".p2align 12")
    A(".p2align 8")
    A(f".type {NAME}_kernel,@function")
    A(f"{NAME}_kernel:")
    A("  s_load_dwordx16 s[4:19], s[0:1], 0")
    A("  s_getpc_b64 s[82:83]")
    A("  v_lshrrev_b32 v14, 6, v0")
    A("  v_and_b32 v1, 63, v0")
    A("  v_readfirstlane_b32 s84, v14")
    A("  s_cmp_ge_u32 s2, 256")
    A("  s_cbranch_scc1 L_end")
    if stamps:
        A(f"  v_mov_b32 v{VST}, 0")
        A("  s_memrealtime s[98:99]")
    if hmap == "hi":
        A("  s_lshr_b32 s85, s2, 4")
        A("  s_and_b32 s86, s2, 15              ; split")
    else:
        A("  s_and_b32 s85, s2, 15")
        A("  s_lshr_b32 s86, s2, 4              ; split")
    A("  s_lshl_b32 s91, s85, 8             ; kvh*256")
    A("  s_lshl_b32 s81, s85, 4")
    A("  s_add_u32 s81, s81, s86")
    A("  s_lshl_b32 s81, s81, 12")
    A(f"  s_cmp_eq_u32 s84, {W}")
    A("  s_cbranch_scc1 L_helper")
    A("  v_lshrrev_b32 v2, 4, v1            ; g")
    A("  v_and_b32 v3, 15, v1               ; n")
    A("  v_and_b32 v14, 3, v1               ; u")
    A("  v_lshrrev_b32 v15, 2, v3           ; t = h")
    A("  v_lshlrev_b32 v4, 6, v2")
    A("  v_lshl_add_u32 v4, v14, 4, v4      ; 64g + 16u")
    A(f"  v_lshrrev_b32 v{VBSEL}, 3, v3         ; bsel")
    A("  v_and_b32 v12, 1, v15              ; hh")
    A("  v_lshl_add_u32 v12, v12, 8, v4")
    A(f"  v_lshl_add_u32 v12, v{VBSEL}, 13, v12")
    A("  s_lshl_b32 s90, s85, 9")
    A("  v_add_u32 v12, s90, v12            ; q offset")
    A("  v_lshl_add_u32 v4, v15, 14, v4     ; voffK0 = 4t*4096 + 64g + 16u")
    A("  v_add_u32 v5, 0x1000, v4")
    A("  v_add_u32 v6, 0x2000, v4")
    A("  v_add_u32 v7, 0x3000, v4")
    A("  s_mul_i32 s92, s86, 303")
    A("  s_add_u32 s93, s92, 303")
    A("  s_lshr_b32 s92, s92, 4             ; lo")
    A("  s_lshr_b32 s93, s93, 4             ; hi")
    A("  s_add_u32 s92, s92, s84            ; i0")
    for m in range(2):
        if m:
            A(f"  s_add_u32 s92, s92, {W}")
        A("  s_add_u32 s94, s92, 27")
        A("  s_cmp_lt_u32 s92, 229")
        A("  s_cselect_b32 s94, s92, s94")
        A("  s_lshl_b32 s94, s94, 16")
        A("  s_add_u32 s94, s94, s91")
        A("  s_cmp_lt_u32 s92, s93")
        if not spec:
            A("  s_cmp_lt_u32 s92, 0")
        A(f"  s_cselect_b32 s{88+m}, s94, -1")
        A(f"  s_cselect_b32 s{SK+4*m+2}, {KVBYTES}, 0")
        A(f"  s_cselect_b32 s{SV+4*m+2}, {KVBYTES}, 0")
        A(f"  s_mov_b32 s{SK+4*m+3}, 0x20000")
        A(f"  s_mov_b32 s{SV+4*m+3}, 0x20000")
    A("  s_waitcnt lgkmcnt(0)")
    if stamps:
        A(f"  v_writelane_b32 v{VST}, s98, 0")
    stamp(1)
    A(f"  s_mov_b64 s[{SK}:{SK+1}], s[6:7]")
    A(f"  global_load_dwordx4 v[{Q}:{Q+3}], v12, s[4:5]")
    for m in range(2):
        if m:
            A(f"  s_mov_b64 s[{SK+4}:{SK+5}], s[6:7]")
        for i in range(4):
            r = X + 16 * m + 4 * i
            A(f"  buffer_load_dwordx4 v[{r}:{r+3}], v{4+i}, s[{SK+4*m}:{SK+4*m+3}], s{88+m} offen{NT}")
    A("  s_branch L_comp2")

    A("L_helper:")
    A("  s_setprio 3")
    if codepf:
        A("  v_lshlrev_b32 v2, 6, v1")
        A("  global_load_dword v3, v2, s[82:83]")
    A("  v_lshlrev_b32 v4, 4, v1            ; lane*16")
    A("  v_add_u32 v5, s81, v4")
    for i in range(4):
        A(f"  v_mov_b32 v{8+i}, -1")
    A("  v_lshlrev_b32 v6, 2, v1")
    A(f"  v_mov_b32 v7, {f32(-1e28)}")
    A("  v_writelane_b32 v7, 0, 16          ; counter = 0")
    A("  s_mov_b64 exec, 0x1ffff")
    A(f"  ds_write_b32 v6, v7 offset:{LDS_MAX}")
    A("  s_mov_b64 exec, -1")
    A("  s_waitcnt lgkmcnt(0)")
    if stamps:
        A(f"  v_writelane_b32 v{VST}, s98, 0")
    stamp(1)
    A("  global_load_dwordx4 v[12:15], v4, s[10:11]")
    A("  global_load_dwordx4 v[16:19], v4, s[10:11] offset:1024")
    A("  s_load_dwordx2 s[32:33], s[12:13], 0")
    A("  global_store_dwordx4 v5, v[8:11], s[18:19] sc1")
    A("  global_store_dwordx4 v5, v[8:11], s[18:19] offset:1024 sc1")
    A("  s_mov_b64 exec, 3")
    A("  global_store_dwordx4 v5, v[8:11], s[18:19] offset:2048 sc1")
    A("  s_mov_b64 exec, -1")
    A("  s_mov_b32 s69, 0")
    A("  s_lshl_b32 s90, s85, 4")
    A("  v_mov_b32 v6, s90")
    A("  v_mov_b32 v7, 1")
    A("  s_waitcnt lgkmcnt(0)")
    for b in range(2):
        s = 32 + b
        A(f"  s_cmp_lt_i32 s{s}, 1")
        A(f"  s_cselect_b32 s34, {1<<b}, 0")
        A(f"  s_cselect_b32 s{s}, 4096, s{s}")
        A(f"  s_or_b32 s69, s69, s34")
        A(f"  s_min_i32 s{s}, s{s}, 4096")
        A(f"  s_add_u32 s{38+b}, s{s}, 15")
        A(f"  s_lshr_b32 s{38+b}, s{38+b}, 4     ; n{b}")
    A("  s_waitcnt vmcnt(3)")
    stamp(2)
    A(f"  ds_write_b128 v4, v[12:15] offset:{LDS_TAB}")
    A(f"  ds_write_b128 v4, v[16:19] offset:{LDS_TAB+1024}")
    A("  v_cmp_ne_u64 s[34:35], v[12:13], v[16:17]")
    A("  v_cmp_ne_u64 s[36:37], v[14:15], v[18:19]")
    A("  s_nop 1")
    A("  s_or_b64 s[34:35], s[34:35], s[36:37]")
    A("  s_ff1_i32_b64 s34, s[34:35]")
    A("  s_lshl_b32 s34, s34, 2")
    A("  s_min_u32 s34, s34, s38")
    A("  s_min_u32 s34, s34, s39            ; P")
    A("  s_add_u32 s35, s38, s39")
    A("  s_sub_u32 s35, s35, s34            ; T")
    A("  s_mul_i32 s36, s35, s86")
    A("  s_add_u32 s37, s36, s35")
    A("  s_lshr_b32 s36, s36, 4             ; lo")
    A("  s_lshr_b32 s37, s37, 4             ; hi")
    A("  s_sub_u32 s40, s37, s36            ; cnt")
    A(f"  s_cmp_gt_u32 s40, {2*W}")
    A("  s_cselect_b32 s41, 4, 0")
    A("  s_or_b32 s69, s69, s41             ; flags")
    A("  s_sub_u32 s41, s34, s38            ; P - n0")
    A("  v_add_u32 v20, s36, v1             ; i")
    A("  v_cmp_gt_u32 s[42:43], s38, v20    ; isA: i < n0")
    A("  v_cmp_gt_u32 s[44:45], s34, v20    ; i < P")
    A("  v_cmp_gt_u32 s[46:47], s40, v1     ; valid")
    A("  v_add_u32 v21, s41, v20")
    A("  v_add_u32 v22, 0x100, v21")
    A("  v_cndmask_b32 v21, v21, v20, s[42:43]   ; j")
    A("  v_cndmask_b32 v22, v22, v20, s[42:43]   ; e")
    A("  v_and_b32 v22, 0x1ff, v22")
    A("  v_lshlrev_b32 v22, 2, v22")
    A("  s_waitcnt lgkmcnt(0)")
    A(f"  ds_read_b32 v22, v22 offset:{LDS_TAB}")
    A("  s_orn2_b64 s[44:45], s[44:45], s[42:43]   ; serves b1")
    A("  s_and_b64 s[42:43], s[42:43], s[46:47]")
    A("  s_and_b64 s[44:45], s[44:45], s[46:47]")
    A("  v_mov_b32 v23, s32")
    A("  v_mov_b32 v24, s33")
    A("  v_cndmask_b32 v23, 0, v23, s[42:43]     ; limA")
    A("  v_cndmask_b32 v24, 0, v24, s[44:45]     ; limB")
    A("  v_lshlrev_b32 v21, 4, v21")
    A("  v_sub_u32 v30, v24, v23")
    A("  v_sub_u32 v29, v23, v21            ; d1 = limA-16j")
    A("  v_mov_b32 v31, s69")
    A("  s_waitcnt lgkmcnt(0)")
    A("  v_lshl_add_u32 v22, v22, 16, s91")
    A("  v_cndmask_b32 v28, -1, v22, s[46:47]    ; soff")
    A(f"  ds_write_b128 v4, v[28:31] offset:{LDS_DESC}")
    stamp(3)
    A("  s_waitcnt vmcnt(0) lgkmcnt(0)")
    A("  s_mov_b64 exec, 1")
    A("  global_atomic_add v6, v7, s[16:17]")
    A("  s_mov_b64 exec, -1")
    stamp(4)
    A("  s_barrier                          ; #0")
    A("  s_branch L_helper2")

    A("L_comp2:")
    A("  v_lshlrev_b32 v8, 14, v2")
    A("  v_lshl_add_u32 v8, v3, 4, v8       ; voffV0 = 4g*4096 + 16n")
    A("  v_add_u32 v9, 0x1000, v8")
    A("  v_add_u32 v10, 0x2000, v8")
    A("  v_add_u32 v11, 0x3000, v8")
    A(f"  s_mov_b64 s[{SV}:{SV+1}], s[8:9]")
    A(f"  s_mov_b64 s[{SV+4}:{SV+5}], s[8:9]")
    A("  s_lshl_b32 s90, s84, 4")
    A(f"  v_mov_b32 v{Y+16}, s90")
    A("  v_and_b32 v13, 1, v14")
    A("  v_lshlrev_b32 v13, 4, v13")
    A(f"  v_mov_b32 v{Y+1}, 0xffff")
    A(f"  v_lshlrev_b32 v13, v13, v{Y+1}       ; 0xffff << 16*(u&1)")
    A("  v_cmp_gt_u32 vcc, 2, v14")
    A(f"  v_lshlrev_b32 v{V4G}, 2, v2          ; 4g")
    A(f"  v_lshlrev_b32 v{VH16}, 4, v15        ; h*16")
    A("  v_cndmask_b32 v12, 0, v13, vcc     ; mask0")
    A("  v_xor_b32 v13, v12, v13            ; mask1")
    A(f"  v_add_u32 v{VAMAX}, v{VH16}, v{V4G}      ; h*16+g*4")
    A(f"  v_mov_b32 v{VM}, {f32(-1e28)}")
    A(f"  v_mov_b32 v{VNEG}, {f32(-1e30)}")
    A(f"  v_mov_b32 v{VL}, 0")
    for i in range(8):
        A(f"  v_mov_b32 v{O+i}, 0")
    A(f"  s_mul_i32 s90, s84, {SLOT}")
    A(f"  v_lshl_add_u32 v{VSLOT}, v1, 4, s90")
    A(f"  s_mov_b32 s87, {f32(C)}")
    A("  v_mov_b32 v2, 1")
    A("  v_mov_b32 v3, 0")
    stamp(2)
    A("  s_barrier                          ; #0")
    A(f"  ds_read_b128 v[{D}:{D+3}], v{Y+16} offset:{LDS_DESC}")
    A(f"  ds_read_b128 v[{D+4}:{D+7}], v{Y+16} offset:{LDS_DESC+16*W}")
    stamp(3)

    def masks(m, slot):
        A(f"  v_sub_u32 v{Y+17}, v{D+4*m+1}, v{V4G}")
        A(f"  v_mad_i32_i24 v{Y+17}, v{VBSEL}, v{D+4*m+2}, v{Y+17}")
        for r in range(4):
            A(f"  v_cmp_lt_i32 s[{SM+8*slot+2*r}:{SM+8*slot+2*r+1}], {r}, v{Y+17}")
    def qk_mfma(kb):
        for i in range(4):
            A(f"  v_mfma_f32_16x16x32_bf16 v[{Y+4*i}:{Y+4*i+3}], v[{kb+4*i}:{kb+4*i+3}], v[{Q}:{Q+3}], 0")
    def qk_rest(m, slot):
        sb = S + 4 * m
        for k in range(4):
            for i in range(4):
                q = f"quad_perm:[{k},{k},{k},{k}] row_mask:0xf bank_mask:0xf"
                if k == 0:
                    A(f"  v_mov_b32_dpp v{sb+i}, v{Y+4*i} {q}")
                else:
                    A(f"  v_add_f32_dpp v{sb+i}, v{Y+4*i+k}, v{sb+i} {q}")
        for r in range(4):
            A(f"  v_cndmask_b32 v{sb+r}, v{VNEG}, v{sb+r}, s[{SM+8*slot+2*r}:{SM+8*slot+2*r+1}]")
        A(f"  v_max3_f32 v{VM}, v{sb}, v{sb+1}, v{VM}")
        A(f"  v_max3_f32 v{VM}, v{sb+2}, v{sb+3}, v{VM}")
    def arrive():
        A("  s_mov_b32 exec_lo, 0x11111111")
        A("  s_mov_b32 exec_hi, 0x11111111")
        A(f"  ds_max_f32 v{VAMAX}, v{VM} offset:{LDS_MAX}")
        A("  s_mov_b64 exec, 1")
        A(f"  ds_add_u32 v3, v2 offset:{LDS_CNT}")
        A("  s_mov_b64 exec, -1")
    def waitmax(tag):
        A(f"L_wm{tag}:")
        A(f"  ds_read_b32 v{Y+4}, v3 offset:{LDS_CNT}")
        A(f"  ds_read_b128 v[{Y}:{Y+3}], v{VH16} offset:{LDS_MAX}")
        A("  s_waitcnt lgkmcnt(0)")
        A(f"  v_cmp_ne_u32 vcc, {W}, v{Y+4}")
        A(f"  s_cbranch_vccnz L_wm{tag}")
        A(f"  v_max3_f32 v{VM}, v{Y}, v{Y+1}, v{Y+2}")
        A(f"  v_max_f32 v{VM}, v{VM}, v{Y+3}")
        A(f"  v_mul_f32 v{VM}, s87, v{VM}          ; M*c")
    def pcalc(m):
        sb = S + 4 * m
        ab = Y + 8 * m
        for r in range(4):
            A(f"  v_fma_f32 v{sb+r}, v{sb+r}, s87, -v{VM}")
        for r in range(4):
            A(f"  v_exp_f32 v{sb+r}, v{sb+r}")
        A("  s_nop 0")
        for r in range(4):
            A(f"  v_add_f32 v{VL}, v{VL}, v{sb+r}")
            A(f"  v_cvt_pk_bf16_f32 v{sb+r}, v{sb+r}, v{sb+r}")
        for r in range(4):
            A(f"  v_and_b32 v{ab+2*r}, v{sb+r}, v12")
            A(f"  v_and_b32 v{ab+2*r+1}, v{sb+r}, v13")
    def lwrite():
        A(f"  v_mov_b32 v14, v{VL}")
        A("  v_mul_u32_u24 v15, 40, v15         ; h*40")
        A("  s_lshl_b32 s90, s84, 2")
        A(f"  v_permlane16_swap_b32 v{VL}, v14")
        A(f"  v_add_f32 v{VL}, v{VL}, v14")
        A(f"  v_mov_b32 v14, v{VL}")
        A("  v_add_u32 v15, s90, v15")
        A("  s_nop 0")
        A(f"  v_permlane32_swap_b32 v{VL}, v14")
        A(f"  v_add_f32 v{VL}, v{VL}, v14")
        A("  s_mov_b64 exec, 0x1111")
        A(f"  ds_write_b32 v15, v{VL} offset:{LDS_L}")
        A("  s_mov_b64 exec, -1")
        A("  v_bfe_u32 v14, v1, 1, 1            ; plane")
        A(f"  v_mul_u32_u24 v14, {PLANE}, v14")
        A("  v_lshrrev_b32 v15, 2, v1")
        A("  v_lshl_add_u32 v14, v15, 4, v14")
        A("  v_and_b32 v15, 1, v1")
        A("  v_lshl_add_u32 v14, v15, 3, v14")
        A("  s_lshl_b32 s90, s84, 8")
        A("  v_add_u32 v14, s90, v14")
        A("  s_lshl_b32 s90, s84, 9")
        A("  s_add_u32 s90, s90, s81")
        A("  v_lshl_add_u32 v15, v1, 3, s90")
        A("  v_mul_u32_u24 v12, 40, v1")
        A("  v_lshlrev_b32 v13, 4, v1")
    def pv(m, vb, base):
        ab = Y + 8 * m
        for i in range(4):
            A(f"  s_waitcnt vmcnt({base+3-i})")
            A(f"  v_mfma_f32_16x16x16_bf16 v[{O}:{O+3}], v[{ab+2*i}:{ab+2*i+1}], v[{vb+4*i}:{vb+4*i+1}], v[{O}:{O+3}]")
            A(f"  v_mfma_f32_16x16x16_bf16 v[{O+4}:{O+7}], v[{ab+2*i}:{ab+2*i+1}], v[{vb+4*i+2}:{vb+4*i+3}], v[{O+4}:{O+7}]")

    A("  s_waitcnt vmcnt(4)")
    qk_mfma(X)
    A("  s_waitcnt lgkmcnt(0)")
    A(f"  v_xor_b32 v{Y+18}, s88, v{D}")
    A(f"  v_xor_b32 v{Y+19}, s89, v{D+4}")
    A(f"  v_or3_b32 v{Y+18}, v{Y+18}, v{Y+19}, v{D+3}")
    A(f"  v_cmp_ne_u32 vcc, 0, v{Y+18}")
    A("  s_cbranch_vccnz L_general")
    masks(0, 0)
    qk_rest(0, 0)
    A("  s_waitcnt vmcnt(0)")
    stamp(4)
    qk_mfma(X + 16)
    masks(1, 1)
    qk_rest(1, 1)
    arrive()
    stamp(5)
    for m in (0, 1):
        for i in range(4):
            r = X + 32 + 16 * m + 4 * i
            A(f"  buffer_load_dwordx4 v[{r}:{r+3}], v{8+i}, s[{SV+4*m}:{SV+4*m+3}], s{88+m} offen{NT}")
    stamp(6)
    waitmax("f")
    stamp(7)
    pcalc(0)
    pcalc(1)
    lwrite()
    stamp(8)
    pv(0, X + 32, 4)
    pv(1, X + 48, 0)
    A("L_tail:")
    stamp(9)
    A("  s_cmp_gt_u32 s84, 3")
    A("  s_nop 5")
    A(f"  ds_write_b128 v{VSLOT}, v[{O}:{O+3}]")
    A(f"  ds_write_b128 v{VSLOT}, v[{O+4}:{O+7}] offset:{PLANE}")
    A("  s_waitcnt lgkmcnt(0)")
    A("  s_barrier                          ; #2")
    A("  s_cbranch_scc1 L_notred")
    for w in range(W):
        A(f"  ds_read_b64 v[{Y+2*w}:{Y+2*w+1}], v14 offset:{w*SLOT}")
    for w in range(1, W):
        A(f"  s_waitcnt lgkmcnt({W-1-w})")
        A(f"  v_pk_add_f32 v[{Y}:{Y+1}], v[{Y}:{Y+1}], v[{Y+2*w}:{Y+2*w+1}]")
    A(f"  global_store_dwordx2 v15, v[{Y}:{Y+1}], s[18:19] {pubflags}")
    A("L_fin:")
    stamp(10)
    stamp_store()
    A("L_end:")
    A("  s_endpgm")
    A("L_notred:")
    A("  s_cmp_lg_u32 s84, 4")
    A("  s_cbranch_scc1 L_fin")
    A("  s_mov_b64 exec, 0xf")
    A(f"  ds_read_b128 v[{Y}:{Y+3}], v13 offset:{LDS_MAX}")
    for k in range(5):
        A(f"  ds_read_b64 v[{Y+4+2*k}:{Y+5+2*k}], v12 offset:{LDS_L+8*k}")
    A("  s_waitcnt lgkmcnt(3)")
    A(f"  v_max3_f32 v{Y}, v{Y}, v{Y+1}, v{Y+2}")
    A(f"  v_pk_add_f32 v[{Y+4}:{Y+5}], v[{Y+4}:{Y+5}], v[{Y+6}:{Y+7}]")
    A(f"  v_max_f32 v{Y}, v{Y}, v{Y+3}")
    A("  s_waitcnt lgkmcnt(1)")
    A(f"  v_pk_add_f32 v[{Y+8}:{Y+9}], v[{Y+8}:{Y+9}], v[{Y+10}:{Y+11}]")
    A(f"  v_mul_f32 v{Y}, s87, v{Y}")
    A("  s_waitcnt lgkmcnt(0)")
    A(f"  v_pk_add_f32 v[{Y+4}:{Y+5}], v[{Y+4}:{Y+5}], v[{Y+12}:{Y+13}]")
    A(f"  v_pk_add_f32 v[{Y+4}:{Y+5}], v[{Y+4}:{Y+5}], v[{Y+8}:{Y+9}]")
    A(f"  v_add_f32 v{Y+1}, v{Y+4}, v{Y+5}")
    A(f"  global_store_dwordx2 v15, v[{Y}:{Y+1}], s[18:19] {pubflags}")
    A("  s_branch L_fin")

    A("L_helper2:")
    stamp(5)
    A("  s_lshr_b32 s92, s86, 2             ; h")
    A("  s_and_b32 s93, s86, 3              ; dq")
    A("  s_lshr_b32 s94, s92, 1")
    A("  s_lshl_b32 s94, s94, 13")
    A("  s_and_b32 s95, s92, 1")
    A("  s_lshl_b32 s95, s95, 8")
    A("  s_add_u32 s94, s94, s95")
    A("  s_lshl_b32 s95, s85, 9")
    A("  s_add_u32 s94, s94, s95")
    A("  s_lshl_b32 s95, s93, 6")
    A("  s_add_u32 s94, s94, s95")
    A("  v_and_b32 v8, 7, v1                ; q")
    A("  v_lshrrev_b32 v9, 4, v1            ; rho")
    A("  v_lshlrev_b32 v9, 1, v9")
    A("  v_lshl_add_u32 v9, v8, 3, v9")
    A("  v_add_u32 v9, s94, v9")
    A("  v_lshrrev_b32 v10, 3, v1           ; pp")
    A("  s_lshl_b32 s94, s85, 16")
    A("  v_lshl_add_u32 v10, v10, 12, s94")
    A("  s_lshl_b32 s95, s92, 3")
    A("  v_add_u32 v11, s95, v10")
    A("  v_add_u32 v12, 0x8000, v11")
    A("  s_lshl_b32 s95, s86, 7             ; h*512 + dq*128")
    A("  v_lshl_add_u32 v10, v8, 4, v10")
    A("  v_add_u32 v10, s95, v10")
    A("  v_add_u32 v13, 0x8000, v10")
    if warm_out:
        A("  s_mov_b64 exec, 1")
        A("  global_load_ushort v3, v9, s[14:15]")
        A("  s_mov_b64 exec, -1")
    A(f"  s_mov_b32 s96, {SPIN}")
    stamp(7)
    A("  s_barrier                          ; #2")
    stamp(8)
    A("L_rdy:")
    A("  global_load_dword v16, v6, s[16:17] sc1")
    A("  s_sub_u32 s96, s96, 1")
    A("  s_cbranch_scc1 L_rdy_done")
    A("  s_waitcnt vmcnt(0)")
    A("  v_cmp_gt_u32 vcc, 16, v16")
    A("  s_cbranch_vccnz L_rdy")
    A("L_rdy_done:")
    if stamps:
        A("  s_sub_u32 s96, %d, s96" % SPIN)
        A(f"  v_writelane_b32 v{VST}, s96, 28")
    A(f"  s_mov_b32 s96, {SPIN}")
    stamp(9)
    A("L_o:")
    A(f"  global_load_dwordx2 v[16:17], v11, s[18:19] offset:2048 {pollflags}")
    A(f"  global_load_dwordx2 v[18:19], v12, s[18:19] offset:2048 {pollflags}")
    A(f"  global_load_dwordx4 v[20:23], v10, s[18:19] {pollflags}")
    A(f"  global_load_dwordx4 v[24:27], v13, s[18:19] {pollflags}")
    A("  s_sub_u32 s96, s96, 1")
    A("  s_cbranch_scc1 L_o_done")
    A("  s_waitcnt vmcnt(0)")
    A("  v_max3_u32 v28, v20, v21, v22")
    A("  v_max3_u32 v29, v23, v24, v25")
    A("  v_max3_u32 v30, v16, v17, v18")
    A("  v_max3_u32 v28, v26, v27, v28")
    A("  v_max3_u32 v29, v19, v29, v30")
    A("  v_max_u32 v28, v28, v29")
    A("  v_cmp_eq_u32 vcc, -1, v28")
    A("  s_cbranch_vccnz L_o")
    A("L_o_done:")
    A("  s_waitcnt vmcnt(0)")
    stamp(10)
    A("  v_max_f32 v28, v16, v18")
    A("  s_nop 1")
    A("  v_max_f32_dpp v28, v28, v28 row_ror:8 row_mask:0xf bank_mask:0xf")
    A("  v_mov_b32 v29, v28")
    A("  s_nop 1")
    A("  v_permlane16_swap_b32 v28, v29")
    A("  v_max_f32 v28, v28, v29")
    A("  v_mov_b32 v29, v28")
    A("  s_nop 1")
    A("  v_permlane32_swap_b32 v28, v29")
    A("  v_max_f32 v28, v28, v29")
    A("  v_sub_f32 v16, v16, v28")
    A("  v_sub_f32 v18, v18, v28")
    A("  v_exp_f32 v16, v16")
    A("  v_exp_f32 v18, v18")
    A("  s_nop 0")
    A("  v_mul_f32 v28, v16, v17")
    for k in range(4):
        A(f"  v_mul_f32 v{20+k}, v16, v{20+k}")
    A("  v_fmac_f32 v28, v18, v19")
    for k in range(4):
        A(f"  v_fmac_f32 v{20+k}, v18, v{24+k}")
    A("  v_mov_b32 v29, v28")
    A("  v_permlane16_swap_b32 v20, v21")
    A("  v_permlane16_swap_b32 v22, v23")
    A("  v_permlane16_swap_b32 v28, v29")
    A("  v_add_f32 v20, v20, v21")
    A("  v_add_f32 v22, v22, v23")
    A("  v_add_f32 v28, v28, v29")
    A("  v_mov_b32 v29, v28")
    A("  v_permlane32_swap_b32 v20, v22")
    A("  s_nop 0")
    A("  v_permlane32_swap_b32 v28, v29")
    A("  v_add_f32 v20, v20, v22")
    A("  v_add_f32 v28, v28, v29")
    A("  s_nop 0")
    A("  v_add_f32_dpp v20, v20, v20 row_ror:8 row_mask:0xf bank_mask:0xf")
    A("  v_add_f32_dpp v28, v28, v28 row_ror:8 row_mask:0xf bank_mask:0xf")
    A("  v_rcp_f32 v28, v28")
    A("  s_mov_b32 exec_lo, 0x00ff00ff")
    A("  s_mov_b32 exec_hi, 0x00ff00ff")
    A("  v_mul_f32 v20, v20, v28")
    A("  v_cvt_pk_bf16_f32 v20, v20, v20")
    A("  global_store_short v9, v20, s[14:15]")
    if stamps:
        A("  s_waitcnt vmcnt(0)")
        stamp(11)
        A("  s_sub_u32 s96, %d, s96" % SPIN)
        A(f"  v_writelane_b32 v{VST}, s96, 29")
        stamp_store("h")
    A("  s_endpgm")

    A("L_general:")
    A(f"  ds_read_b128 v[{D+8}:{D+11}], v{Y+16} offset:{LDS_DESC+32*W}")
    A(f"  ds_read_b128 v[{D+12}:{D+15}], v{Y+16} offset:{LDS_DESC+48*W}")
    A("  s_waitcnt vmcnt(0) lgkmcnt(0)")
    for m in range(4):
        A(f"  v_readfirstlane_b32 s{70+m}, v{D+4*m}")
    A(f"  v_readfirstlane_b32 s74, v{D+3}")
    for m in range(4):
        A(f"  s_mov_b64 s[{SK+4*m}:{SK+4*m+1}], s[6:7]")
        A(f"  s_mov_b64 s[{SV+4*m}:{SV+4*m+1}], s[8:9]")
        A(f"  s_cmp_lg_u32 s{70+m}, -1")
        A(f"  s_cselect_b32 s{SK+4*m+2}, {KVBYTES}, 0")
        A(f"  s_cselect_b32 s{SV+4*m+2}, {KVBYTES}, 0")
        A(f"  s_mov_b32 s{SK+4*m+3}, 0x20000")
        A(f"  s_mov_b32 s{SV+4*m+3}, 0x20000")
    for m in range(4):
        for i in range(4):
            r = X + 16 * m + 4 * i
            A(f"  buffer_load_dwordx4 v[{r}:{r+3}], v{4+i}, s[{SK+4*m}:{SK+4*m+3}], s{70+m} offen{NT}")
    A("  s_and_b32 s75, s74, 1")
    A("  s_bfe_u32 s76, s74, 0x10001")
    A("  s_mul_i32 s75, s75, 0x00ff00ff")
    A("  s_mul_i32 s76, s76, 0xff00ff00")
    A("  s_or_b32 s75, s75, s76")
    A("  s_mov_b32 exec_lo, s75")
    A("  s_mov_b32 exec_hi, s75")
    for i in range(4):
        A(f"  v_mov_b32 v{Q+i}, 0")
    A("  s_mov_b64 exec, -1")
    A("  s_waitcnt vmcnt(0)")
    for m in range(4):
        qk_mfma(X + 16 * m)
        masks(m, 0)
        qk_rest(m, 0)
    arrive()
    for m in range(4):
        for i in range(4):
            r = X + 16 * m + 4 * i
            A(f"  buffer_load_dwordx4 v[{r}:{r+3}], v{8+i}, s[{SV+4*m}:{SV+4*m+3}], s{70+m} offen{NT}")
    waitmax("g")
    for m in range(4):
        pcalc(m)
    lwrite()
    for m in range(4):
        pv(m, X + 16 * m, 12 - 4 * m)
    A("  s_branch L_tail")
    A('.section .rodata,"a"')
    A(".p2align 6")
    A(f".amdhsa_kernel {NAME}_kernel")
    A("  .amdhsa_next_free_vgpr 168")
    A("  .amdhsa_next_free_sgpr 102")
    A("  .amdhsa_accum_offset 168")
    A("  .amdhsa_group_segment_fixed_size 0")
    A("  .amdhsa_kernarg_size 64")
    A("  .amdhsa_user_sgpr_count 2")
    A("  .amdhsa_user_sgpr_kernarg_segment_ptr 1")
    A("  .amdhsa_system_sgpr_workgroup_id_x 1")
    A(".end_amdhsa_kernel")
    return "\n".join(L) + "\n"

if __name__ == "__main__":
    import argparse
    ap = argparse.ArgumentParser()
    ap.add_argument("-o", required=True)
    ap.add_argument("--stamps", action="store_true")
    ap.add_argument("--no-nt", action="store_true")
    ap.add_argument("--no-warm", action="store_true")
    ap.add_argument("--no-spec", action="store_true")
    ap.add_argument("--no-codepf", action="store_true")
    ap.add_argument("--poll", default="sc1")
    ap.add_argument("--pub", default="sc1")
    ap.add_argument("--hmap", default="hi")
    ap.add_argument("--dbgstats", action="store_true")
    a = ap.parse_args()
    open(a.o, "w").write(gen(a.stamps, not a.no_nt, not a.no_warm, not a.no_spec, a.poll, not a.no_codepf, a.hmap, a.pub, a.dbgstats))
```

```python
import sys, math, struct

NAME = "standalone__paged_block_table_kv_radixattention__decode"
HDR = open("cdna_kernels/%s.s.ref" % NAME).read().split("; Override launch")[0]

def f32(x):
    return "0x%08x" % struct.unpack("<I", struct.pack("<f", x))[0]

W = 10
NU = 9
NUG = 16
KVBYTES = 25165824
SLOT = 2048
LDS_TAB = W * SLOT
LDS_DESC = LDS_TAB + 2048
LDS_TAG = LDS_DESC + 48
LDS_INIT = LDS_DESC + 64
LDS_MAX = LDS_INIT
LDS_CNT = LDS_INIT + 64
LDS_CNT2 = LDS_INIT + 68
LDS_L = LDS_INIT + 80
LDS_TOTAL = LDS_INIT + 256
SPIN = 1 << 15

def gen(stamps=False, nt=True, pollflags="sc1", codepf=True, pubflags="sc1", cnts=(14, 18, 16, 16),
        outflags="", xs=(), rec=2304, psleep=0, locflags="", n1=64):
    L = []
    A = L.append
    C = (128 ** -0.5) * math.log2(math.e)
    NT = " nt" if nt else ""
    VST = 167
    BOFF = 1 << 20
    assert cnts[0] + cnts[1] == 32 and cnts[2] + cnts[3] == 32 and -(-1212 // min(cnts)) <= W * NU and -(-2048 // min(cnts)) <= W * NUG and max(cnts) <= 24
    magic = [(1 << 24) // c + 1 for c in cnts]
    def stamp(k):
        if not stamps: return
        A("  s_memrealtime s[98:99]")
        A("  s_waitcnt lgkmcnt(0)")
        A(f"  v_writelane_b32 v{VST}, s98, {k}")
    def stamp_store():
        if not stamps: return
        A("  s_getreg_b32 s98, hwreg(HW_REG_XCC_ID)")
        A("  s_getreg_b32 s99, hwreg(HW_REG_HW_ID)")
        A(f"  v_writelane_b32 v{VST}, s98, 30")
        A(f"  v_writelane_b32 v{VST}, s99, 31")
        A("  s_lshl_b32 s98, s2, 4")
        A("  s_add_u32 s98, s98, s84")
        A("  s_lshl_b32 s98, s98, 7")
        A("  s_add_u32 s98, s98, 0x200000")
        A("  s_mov_b64 exec, -1")
        A("  v_lshl_add_u32 v14, v1, 2, s98")
        A("  s_mov_b32 exec_hi, 0")
        A(f"  global_store_dword v14, v{VST}, s[18:19]")
    VK, VV = 4, 5
    VMSK = 6
    D = 8
    Q = 16
    VM, VL, VNEG, VAMAX, VH16, VSLOT, VG, VB = 20, 21, 22, 23, 24, 25, 26, 27
    O = 28
    S = 36
    Y = 52
    X = 88
    SO = 32
    A(HDR.rstrip())
    A(f"; @launch grid=(256,1,1) block=({64*(W+1)},1,1) lds={LDS_TOTAL}")
    A('.amdgcn_target "amdgcn-amd-amdhsa--gfx950"')
    A(".text")
    A(f".globl {NAME}_kernel")
    A(".p2align 12")
    A(".p2align 8")
    A(f".type {NAME}_kernel,@function")
    A(f"{NAME}_kernel:")
    A("  s_load_dwordx16 s[4:19], s[0:1], 0")
    A("  s_getpc_b64 s[82:83]")
    A("  v_lshrrev_b32 v14, 6, v0")
    A("  v_and_b32 v1, 63, v0")
    A("  v_readfirstlane_b32 s84, v14")
    A("  s_cmp_ge_u32 s2, 256")
    A("  s_cbranch_scc1 L_end")
    if stamps:
        A(f"  v_mov_b32 v{VST}, 0")
        A("  s_memrealtime s[98:99]")
    A("  s_and_b32 s85, s2, 7               ; group x")
    A("  s_lshr_b32 s90, s2, 3              ; j")
    A("  s_bitcmp0_b32 s2, 0")
    A(f"  s_cselect_b32 s79, {cnts[0]}, {cnts[2]}         ; nA")
    A(f"  s_mov_b32 s80, {magic[0]}")
    A(f"  s_cselect_b32 s80, s80, {magic[2]}")
    A(f"  s_mov_b32 s91, {magic[1]}")
    A(f"  s_cselect_b32 s91, s91, {magic[3]}")
    A("  s_lshl_b32 s85, s85, 1")
    A("  s_sub_u32 s86, s90, s79")
    A("  s_cmp_ge_u32 s90, s79")
    A("  s_cselect_b32 s86, s86, s90        ; idx")
    A("  s_cselect_b32 s80, s91, s80        ; magic")
    A("  s_addc_u32 s85, s85, 0             ; head")
    A("  s_lshl_b32 s91, s85, 8             ; head*256")
    A(f"  s_mul_i32 s81, s2, {rec}")
    A(f"  s_cmp_eq_u32 s84, {W}")
    A("  s_cbranch_scc1 L_helper")
    A(f"  s_mul_i32 s92, s86, {1212*256}")
    A(f"  s_add_u32 s93, s92, {1212*256}")
    A("  s_mul_hi_u32 s92, s92, s80         ; lo")
    A("  s_mul_hi_u32 s93, s93, s80         ; hi")
    A(f"  s_mul_i32 s94, s84, {NU}")
    A("  s_add_u32 s94, s94, s92")
    A("  v_add_u32 v8, s94, v1              ; unit")
    A("  v_add_u32 v9, 108, v8")
    A("  v_cmp_gt_u32 vcc, 916, v8")
    A(f"  v_lshrrev_b32 v{VG}, 4, v1           ; g")
    A("  v_and_b32 v3, 15, v1               ; n")
    A("  v_cndmask_b32 v9, v9, v8, vcc")
    A("  v_cmp_gt_u32 vcc, s93, v8")
    A("  v_lshl_add_u32 v9, v9, 14, s91")
    A(f"  v_mov_b32 v10, {KVBYTES}")
    A("  v_cndmask_b32 v9, v10, v9, vcc")
    A("  v_and_b32 v14, 3, v1               ; u")
    A("  v_lshrrev_b32 v15, 2, v3           ; t = h")
    for j in range(NU):
        A(f"  v_readlane_b32 s{SO+j}, v9, {j}")
    A(f"  v_lshlrev_b32 v{VK}, 6, v{VG}")
    A(f"  v_lshl_add_u32 v{VK}, v14, 4, v{VK}      ; 64g + 16u")
    A(f"  v_lshrrev_b32 v{VB}, 3, v3           ; bsel")
    A("  v_and_b32 v12, 1, v15              ; hh")
    A(f"  v_lshl_add_u32 v12, v12, 8, v{VK}")
    A(f"  v_lshl_add_u32 v12, v{VB}, 13, v12")
    A("  s_lshl_b32 s90, s85, 9")
    A("  v_add_u32 v12, s90, v12            ; q offset")
    A(f"  v_lshl_add_u32 v{VK}, v15, 12, v{VK}     ; voffK = t*4096 + 64g + 16u")
    A(f"  s_mov_b32 s22, {KVBYTES}")
    A("  s_mov_b32 s23, 0x20000")
    A("  s_waitcnt lgkmcnt(0)")
    if stamps:
        A(f"  v_writelane_b32 v{VST}, s98, 0")
    stamp(1)
    A("  s_mov_b64 s[20:21], s[6:7]")
    A(f"  global_load_dwordx4 v[{Q}:{Q+3}], v12, s[4:5]")
    for j in range(NU):
        r = X + 4 * j
        A(f"  buffer_load_dwordx4 v[{r}:{r+3}], v{VK}, s[20:23], s{SO+j} offen{NT}")
    A("  s_branch L_comp2")

    A("L_helper:")
    A("  s_setprio 3")
    A("  s_memrealtime s[60:61]")
    if codepf:
        A("  v_lshlrev_b32 v2, 6, v1")
        A("  global_load_dword v3, v2, s[82:83]")
    A("  v_lshlrev_b32 v4, 4, v1            ; lane*16")
    A("  v_lshlrev_b32 v6, 2, v1            ; lane*4")
    A(f"  v_mov_b32 v7, {f32(-1e28)}")
    A("  v_cmp_gt_u32 vcc, 16, v1")
    A("  v_mov_b32 v8, 0")
    A("  s_mov_b32 s69, 0")
    A("  v_cndmask_b32 v7, 0, v7, vcc")
    A(f"  ds_write_b32 v6, v7 offset:{LDS_INIT}")
    A("  s_waitcnt lgkmcnt(0)")
    if stamps:
        A(f"  v_writelane_b32 v{VST}, s98, 0")
    stamp(1)
    A("  global_load_dwordx4 v[12:15], v4, s[10:11]")
    A("  global_load_dwordx4 v[16:19], v4, s[10:11] offset:1024")
    A("  s_load_dwordx2 s[32:33], s[12:13], 0")
    A("  s_cmp_lg_u32 s2, 0")
    A("  s_cbranch_scc1 L_nononce")
    A("  s_lshr_b64 s[60:61], s[60:61], 1")
    A("  s_bitset1_b32 s60, 0")
    A("  s_bfe_u32 s61, s60, 0x10008")
    A("  s_xor_b32 s60, s60, s61")
    A("  v_mov_b32 v9, s60")
    A("  s_mov_b64 exec, 1")
    A("  global_store_dword v8, v9, s[16:17] sc1")
    A("  s_mov_b64 exec, -1")
    A("  s_waitcnt vmcnt(1)")
    A("L_nononce:")
    A("  s_waitcnt lgkmcnt(0)")
    for b in range(2):
        s = 32 + b
        A(f"  s_cmp_lt_i32 s{s}, 1")
        A(f"  s_cselect_b32 s34, {1<<b}, 0")
        A(f"  s_cselect_b32 s{s}, 4096, s{s}")
        A(f"  s_or_b32 s69, s69, s34")
        A(f"  s_min_i32 s{s}, s{s}, 4096")
        A(f"  s_add_u32 s{38+b}, s{s}, 15")
        A(f"  s_lshr_b32 s{38+b}, s{38+b}, 4     ; n{b}")
    A("  s_cmp_eq_u32 s2, 0")
    A("  s_cbranch_scc1 L_btok")
    A("  s_waitcnt vmcnt(0)")
    A("L_btok:")
    stamp(2)
    A(f"  ds_write_b128 v4, v[12:15] offset:{LDS_TAB}")
    A(f"  ds_write_b128 v4, v[16:19] offset:{LDS_TAB+1024}")
    A("  v_cmp_ne_u64 s[34:35], v[12:13], v[16:17]")
    A("  v_cmp_ne_u64 s[36:37], v[14:15], v[18:19]")
    A("  s_nop 1")
    A("  s_or_b64 s[34:35], s[34:35], s[36:37]")
    A("  s_ff1_i32_b64 s34, s[34:35]")
    A("  s_lshl_b32 s34, s34, 2")
    A("  s_min_u32 s34, s34, s38")
    A("  s_min_u32 s34, s34, s39            ; P")
    A("  s_add_u32 s35, s38, s39")
    A("  s_sub_u32 s35, s35, s34            ; T")
    A("  s_cmp_lg_u32 s35, 303")
    A("  s_cselect_b32 s41, 4, 0")
    A("  s_or_b32 s69, s69, s41")
    A("  s_lshl_b32 s35, s35, 10            ; 4T*256")
    A("  s_mul_i32 s36, s35, s86")
    A("  s_add_u32 s37, s36, s35")
    A("  s_mul_hi_u32 s36, s36, s80         ; lo")
    A("  s_mul_hi_u32 s37, s37, s80         ; hi")
    A("  s_sub_u32 s41, s34, s38")
    A("  s_add_u32 s41, s41, 256            ; P - n0 + 256")
    A("  s_lshr_b32 s40, s36, 2")
    A("  v_add_u32 v12, s40, v1             ; i")
    A("  v_cmp_gt_u32 vcc, s38, v12         ; i < n0")
    A("  v_add_u32 v13, s41, v12")
    A("  v_add_u32 v14, 27, v12")
    A("  v_cndmask_b32 v13, v13, v12, vcc   ; e")
    A("  v_cmp_gt_u32 vcc, 229, v12")
    A("  v_and_b32 v13, 0x1ff, v13")
    A("  v_lshlrev_b32 v13, 2, v13")
    A("  v_cndmask_b32 v14, v14, v12, vcc")
    A("  v_lshlrev_b32 v12, 2, v12")
    A("  s_waitcnt lgkmcnt(0)")
    A(f"  ds_read_b32 v13, v13 offset:{LDS_TAB}")
    A("  v_cmp_gt_u32 s[42:43], s37, v12    ; 4i < hi")
    A("  s_lshl_b32 s44, s36, 2")
    A("  s_sub_u32 s44, 3, s44              ; adj")
    A("  s_lshl_b32 s45, s37, 2             ; 4hi")
    A("  s_min_u32 s46, s32, s45")
    A("  s_add_u32 s46, s46, s44            ; a0'")
    A("  s_lshl_b32 s47, s34, 4             ; 16P")
    A("  s_min_u32 s48, s47, s33")
    A("  s_min_u32 s48, s48, s45")
    A("  s_add_u32 s48, s48, s44            ; a1'")
    A("  s_lshl_b32 s49, s38, 4             ; 16n0")
    A("  s_sub_u32 s50, s49, s47")
    A("  s_add_u32 s50, s50, s33")
    A("  s_min_u32 s50, s50, s45")
    A("  s_add_u32 s50, s50, s44            ; c1'")
    A("  s_add_u32 s49, s49, s44            ; b1'")
    A("  v_mov_b32 v30, 0")
    for lane, sr in [(0, "s46"), (4, "s48"), (5, "s49"), (6, "s50"), (8, "s38"), (9, "s41"), (10, "s36"), (11, "s37")]:
        A(f"  v_writelane_b32 v30, {sr}, {lane}")
    A("  s_waitcnt lgkmcnt(0)")
    A("  v_cmp_ne_u32 vcc, v13, v14")
    A("  s_and_b64 vcc, vcc, s[42:43]")
    A("  s_cselect_b32 s41, 4, 0")
    A("  s_or_b32 s69, s69, s41")
    A("  v_writelane_b32 v30, s69, 3")
    A("  v_writelane_b32 v30, s69, 7")
    A("  s_mov_b64 exec, 0xfff")
    A(f"  ds_write_b32 v6, v30 offset:{LDS_DESC}")
    A("  s_mov_b64 exec, -1")
    A("  s_waitcnt lgkmcnt(0)")
    stamp(3)
    A("  s_barrier                          ; #0")
    A("  s_branch L_cons")

    A("L_comp2:")
    A(f"  v_lshlrev_b32 v{VV}, 12, v{VG}")
    A(f"  v_lshl_add_u32 v{VV}, v3, 4, v{VV}       ; voffV = g*4096 + 16n")
    A("  s_mov_b64 s[24:25], s[8:9]")
    A(f"  s_mov_b32 s26, {KVBYTES}")
    A("  s_mov_b32 s27, 0x20000")
    A(f"  v_lshlrev_b32 v{VB}, 4, v{VB}")
    A("  v_and_b32 v13, 1, v14")
    A("  v_lshlrev_b32 v13, 4, v13")
    A("  v_mov_b32 v2, 0xffff")
    A("  v_lshlrev_b32 v13, v13, v2         ; 0xffff << 16*(u&1)")
    A("  v_cmp_gt_u32 vcc, 2, v14")
    A(f"  v_lshlrev_b32 v{VH16}, 4, v15        ; h*16")
    A(f"  v_lshl_add_u32 v{VAMAX}, v{VG}, 2, v{VH16}   ; h*16+g*4")
    A("  v_cndmask_b32 v12, 0, v13, vcc     ; mask0")
    A("  v_xor_b32 v13, v12, v13            ; mask1")
    A(f"  v_mov_b32 v{VM}, {f32(-1e28)}")
    A(f"  v_mov_b32 v{VNEG}, {f32(-1e30)}")
    A(f"  v_mov_b32 v{VL}, 0")
    for i in range(8):
        A(f"  v_mov_b32 v{O+i}, 0")
    A("  s_lshl_b32 s90, s84, 11")
    A(f"  v_lshl_add_u32 v{VSLOT}, v1, 4, s90")
    A(f"  s_mov_b32 s87, {f32(C)}")
    A("  s_mov_b32 s88, 0xffffff00")
    A("  v_mov_b32 v2, 1")
    A("  v_mov_b32 v3, 0")
    stamp(2)
    A("  s_barrier                          ; #0")
    A(f"  ds_read_b128 v[{D}:{D+3}], v{VB} offset:{LDS_DESC}")
    stamp(3)

    def mkmask(nu):
        A(f"  s_mul_i32 s90, s84, {4*nu}")
        A(f"  v_add_u32 v14, s90, v{VG}            ; B'")
        for k in range(3):
            A(f"  v_sub_u32 v{D+k}, v{D+k}, v14")
        for k in range(3):
            A(f"  v_ashrrev_i32 v{D+k}, 2, v{D+k}")
        for k in range(3):
            A(f"  v_med3_i32 v{D+k}, v{D+k}, 0, 31")
        for k in range(3):
            A(f"  v_bfm_b32 v{D+k}, v{D+k}, 0")
        A(f"  v_bfi_b32 v{VMSK}, v{D+1}, 0, v{D+2}     ; c & ~b")
        A(f"  v_or_b32 v{VMSK}, v{VMSK}, v{D}")
    def qk_mfma(js, kreg, treg):
        for j in js:
            A(f"  v_mfma_f32_16x16x32_bf16 v[{treg(j)}:{treg(j)+3}], v[{kreg(j)}:{kreg(j)+3}], v[{Q}:{Q+3}], 0")
    def qk_rest(js, treg):
        assert len(js) >= 3
        for k in range(4):
            for j in js:
                q = f"quad_perm:[{k},{k},{k},{k}] row_mask:0xf bank_mask:0xf"
                if k == 0:
                    A(f"  v_mov_b32_dpp v{S+j}, v{treg(j)} {q}")
                else:
                    A(f"  v_add_f32_dpp v{S+j}, v{treg(j)+k}, v{S+j} {q}")
        for j in js:
            A(f"  v_bfe_i32 v{treg(j)}, v{VMSK}, {j}, 1")
        for j in js:
            A(f"  v_bfi_b32 v{S+j}, v{treg(j)}, v{S+j}, v{VNEG}")
        js = list(js)
        while js:
            if len(js) >= 2:
                A(f"  v_max3_f32 v{VM}, v{S+js[0]}, v{S+js[1]}, v{VM}"); js = js[2:]
            else:
                A(f"  v_max_f32 v{VM}, v{S+js[0]}, v{VM}"); js = js[1:]
    def arrive():
        A("  s_mov_b32 exec_lo, 0x11111111")
        A("  s_mov_b32 exec_hi, 0x11111111")
        A(f"  ds_max_f32 v{VAMAX}, v{VM} offset:{LDS_MAX}")
        A("  s_mov_b64 exec, 1")
        A(f"  ds_add_u32 v3, v2 offset:{LDS_CNT}")
        A("  s_mov_b64 exec, -1")
    def waitmax(tag):
        A(f"L_wm{tag}:")
        A(f"  ds_read_b32 v{Y+4}, v3 offset:{LDS_CNT}")
        A(f"  ds_read_b128 v[{Y}:{Y+3}], v{VH16} offset:{LDS_MAX}")
        A("  s_waitcnt lgkmcnt(0)")
        A(f"  v_cmp_ne_u32 vcc, {W}, v{Y+4}")
        A(f"  s_cbranch_vccnz L_wm{tag}")
        A(f"  v_max3_f32 v{VM}, v{Y}, v{Y+1}, v{Y+2}")
        A(f"  v_max_f32 v{VM}, v{VM}, v{Y+3}")
        A(f"  v_mul_f32 v{VM}, s87, v{VM}          ; M*c")
        A(f"  v_and_b32 v{VM}, s88, v{VM}")
    def pcalc(nu):
        for j in range(nu):
            A(f"  v_fma_f32 v{S+j}, v{S+j}, s87, -v{VM}")
        for j in range(nu):
            A(f"  v_exp_f32 v{S+j}, v{S+j}")
        for j in range(nu):
            A(f"  v_add_f32 v{VL}, v{VL}, v{S+j}")
            A(f"  v_cvt_pk_bf16_f32 v{S+j}, v{S+j}, v{S+j}")
        A(f"  v_mov_b32 v14, v{VL}")
        A("  v_mul_u32_u24 v15, 40, v15         ; h*40")
        A("  s_lshl_b32 s90, s84, 2")
        A(f"  v_permlane16_swap_b32 v{VL}, v14")
        A(f"  v_add_f32 v{VL}, v{VL}, v14")
        A(f"  v_mov_b32 v14, v{VL}")
        A("  v_add_u32 v15, s90, v15")
        A("  s_nop 0")
        A(f"  v_permlane32_swap_b32 v{VL}, v14")
        A(f"  v_add_f32 v{VL}, v{VL}, v14")
        A("  s_mov_b64 exec, 0x1111")
        A(f"  ds_write_b32 v15, v{VL} offset:{LDS_L}")
        A("  s_mov_b64 exec, 1")
        A(f"  ds_add_u32 v3, v2 offset:{LDS_CNT2}")
        A("  s_mov_b64 exec, -1")
        for j in range(nu):
            A(f"  v_and_b32 v{Y+2*j}, v{S+j}, v12")
            A(f"  v_and_b32 v{Y+2*j+1}, v{S+j}, v13")
        A("  s_lshl_b32 s90, s84, 10")
        A("  v_lshl_add_u32 v14, v1, 4, s90")
        A("  v_add_u32 v15, s81, v14")
        A(f"  v_add_u32 v12, {BOFF}, v15")
    def pv(nu, vreg):
        for j in range(nu):
            A(f"  s_waitcnt vmcnt({nu-1-j})")
            A(f"  v_mfma_f32_16x16x16_bf16 v[{O}:{O+3}], v[{Y+2*j}:{Y+2*j+1}], v[{vreg(j)}:{vreg(j)+1}], v[{O}:{O+3}]")
            A(f"  v_mfma_f32_16x16x16_bf16 v[{O+4}:{O+7}], v[{Y+2*j}:{Y+2*j+1}], v[{vreg(j)+2}:{vreg(j)+3}], v[{O+4}:{O+7}]")

    kreg = lambda j: X + 4 * j
    treg = lambda j: Y + 4 * j
    A("  s_waitcnt vmcnt(6)")
    qk_mfma([0, 1, 2], kreg, treg)
    A("  s_waitcnt lgkmcnt(0)")
    A(f"  v_cmp_ne_u32 vcc, 0, v{D+3}")
    A("  s_cbranch_vccnz L_general")
    mkmask(NU)
    A("  s_waitcnt vmcnt(3)")
    qk_mfma([3, 4, 5], kreg, treg)
    qk_rest([0, 1, 2], treg)
    A("  s_waitcnt vmcnt(0)")
    stamp(4)
    qk_mfma([6, 7, 8], kreg, treg)
    qk_rest([3, 4, 5], treg)
    qk_rest([6, 7, 8], treg)
    arrive()
    stamp(5)
    for j in range(NU):
        r = X + 36 + 4 * j
        A(f"  buffer_load_dwordx4 v[{r}:{r+3}], v{VV}, s[24:27], s{SO+j} offen{NT}")
    stamp(6)
    waitmax("f")
    stamp(7)
    pcalc(NU)
    stamp(8)
    pv(NU, lambda j: X + 36 + 4 * j)
    A("L_tail:")
    stamp(9)
    A("  s_cmp_gt_u32 s84, 1")
    A("  s_nop 5")
    A(f"  ds_write_b128 v{VSLOT}, v[{O}:{O+3}]")
    A(f"  ds_write_b128 v{VSLOT}, v[{O+4}:{O+7}] offset:1024")
    A("  s_waitcnt lgkmcnt(0)")
    A("  s_barrier                          ; #2")
    A("  s_cbranch_scc1 L_fin")
    for w in range(W):
        A(f"  ds_read_b128 v[{X+4*w}:{X+4*w+3}], v14 offset:{w*SLOT}")
    A(f"  ds_read_b128 v[{D}:{D+3}], v3 offset:{LDS_TAG}")
    for w in range(1, W):
        A(f"  s_waitcnt lgkmcnt({W-w})")
        A(f"  v_pk_add_f32 v[{X}:{X+1}], v[{X}:{X+1}], v[{X+4*w}:{X+4*w+1}]")
        A(f"  v_pk_add_f32 v[{X+2}:{X+3}], v[{X+2}:{X+3}], v[{X+4*w+2}:{X+4*w+3}]")
    A("  s_waitcnt lgkmcnt(0)")
    for k in range(4):
        A(f"  v_and_or_b32 v{X+k}, v{X+k}, s88, v{D+k}")
    if "noloc" not in xs:
        A(f"  global_store_dwordx4 v15, v[{X}:{X+3}], s[18:19] {locflags}")
    if "nopub" not in xs:
        A(f"  global_store_dwordx4 v12, v[{X}:{X+3}], s[18:19] {pubflags}")
    A("L_fin:")
    stamp(10)
    stamp_store()
    A("L_end:")
    A("  s_endpgm")

    A("L_non:")
    A("  s_waitcnt vmcnt(0)")
    A("  v_cmp_eq_u32 vcc, 0, v44")
    A("  s_cbranch_vccz L_non_ok")
    A("  s_sleep 8")
    A("  global_load_dword v44, v8, s[16:17] sc1")
    A("  s_sub_u32 s96, s96, 1")
    A("  s_cbranch_scc0 L_non")
    A("  s_waitcnt vmcnt(0)")
    A("L_non_ok:")
    stamp(5)
    if "tlbw" in xs:
        A("  s_mov_b64 exec, 1")
        A("  global_load_dword v72, v3, s[18:19] offset:2048")
        A("  global_load_ushort v73, v9, s[14:15]")
        A("  s_mov_b64 exec, -1")
    if "prepoll" in xs:
        for k in range(3):
            A(f"  global_load_dwordx4 v[{60+4*k}:{63+4*k}], v{10+k}, s[18:19] {pollflags}")
    if "prepollml" in xs:
        for k in range(3):
            A(f"  global_load_dwordx4 v[{48+4*k}:{51+4*k}], v{13+k}, s[18:19] offset:2048 {pollflags}")
    A("  v_bfe_u32 v45, v44, 8, 8")
    A("  v_bfe_u32 v46, v44, 16, 8")
    A("  v_lshrrev_b32 v47, 24, v44")
    A("  v_and_b32 v44, 0xff, v44")
    A("  s_mov_b64 exec, 1")
    A(f"  ds_write_b128 v8, v[44:47] offset:{LDS_TAG}")
    A("  s_mov_b64 exec, 0xf")
    A("L_lw:")
    A("  s_sleep 2")
    A(f"  ds_read_b32 v40, v8 offset:{LDS_CNT2}")
    A(f"  ds_read_b128 v[16:19], v4 offset:{LDS_MAX}")
    for k in range(5):
        A(f"  ds_read_b64 v[{20+2*k}:{21+2*k}], v2 offset:{LDS_L+8*k}")
    A("  s_waitcnt lgkmcnt(0)")
    A(f"  v_cmp_ne_u32 vcc, {W}, v40")
    A("  s_cbranch_vccnz L_lw")
    A("  v_max3_f32 v16, v16, v17, v18")
    A("  v_pk_add_f32 v[20:21], v[20:21], v[22:23]")
    A("  v_pk_add_f32 v[24:25], v[24:25], v[26:27]")
    A("  v_max_f32 v16, v16, v19")
    A("  v_pk_add_f32 v[20:21], v[20:21], v[28:29]")
    A("  v_mul_f32 v16, s87, v16")
    A("  v_pk_add_f32 v[20:21], v[20:21], v[24:25]")
    A("  v_and_or_b32 v16, v16, s88, v44")
    A("  v_add_f32 v17, v20, v21")
    A("  v_mov_b32 v18, v46")
    A("  v_mov_b32 v19, v47")
    A("  v_and_or_b32 v17, v17, s88, v45")
    if "noloc" not in xs:
        A(f"  global_store_dwordx4 v3, v[16:19], s[18:19] offset:2048 {locflags}")
    A(f"  v_add_u32 v3, {BOFF}, v3")
    A(f"  global_store_dwordx4 v3, v[16:19], s[18:19] offset:2048 {pubflags}")
    A("  s_mov_b64 exec, -1")
    A(f"  s_mov_b32 s96, {n1}")
    A("  s_mov_b32 s78, 0")
    if "latepre" in xs:
        for k in range(3):
            A(f"  global_load_dwordx4 v[{60+4*k}:{63+4*k}], v{10+k}, s[18:19] {pollflags}")
        for k in range(3):
            A(f"  global_load_dwordx4 v[{48+4*k}:{51+4*k}], v{13+k}, s[18:19] offset:2048 {pollflags}")
    stamp(6)
    A("  s_barrier                          ; #2")
    stamp(8)
    if "nocons" in xs:
        A("  s_branch L_cend")
    A("L_ml:")
    for k in range(3):
        A(f"  global_load_dwordx4 v[{16+4*k}:{19+4*k}], v{13+k}, s[18:19] offset:2048 {pollflags}")
    A("L_o:")
    for k in range(3):
        A(f"  global_load_dwordx4 v[{28+4*k}:{31+4*k}], v{10+k}, s[18:19] {pollflags}")
    A("  s_cmp_lg_u32 s89, 0")
    A("  s_cbranch_scc1 L_chk")
    A("  s_waitcnt vmcnt(3)")
    def check(base):
        for k in range(3):
            for i in range(4):
                A(f"  v_xor_b32 v{base+4*k+i}, v{base+4*k+i}, v{44+i}")
        A(f"  v_or3_b32 v40, v{base}, v{base+1}, v{base+2}")
        A(f"  v_or3_b32 v41, v{base+3}, v{base+4}, v{base+5}")
        A(f"  v_or3_b32 v42, v{base+6}, v{base+7}, v{base+8}")
        A(f"  v_or3_b32 v40, v{base+9}, v{base+10}, v40")
        A(f"  v_or3_b32 v41, v{base+11}, v41, v42")
        A("  v_or_b32 v40, v40, v41")
        A("  v_and_b32 v40, 0xff, v40")
        A("  v_cmp_ne_u32 vcc, 0, v40")
    check(16)
    A("  s_cbranch_vccnz L_retry_ml")
    A("L_wts:")
    A("  v_cndmask_b32 v20, v20, v5, s[52:53]")
    A("  v_cndmask_b32 v24, v24, v5, s[54:55]")
    A("  v_max3_f32 v40, v16, v20, v24")
    def xred(op):
        A("  s_nop 1")
        A(f"  {op}_dpp v40, v40, v40 row_ror:8 row_mask:0xf bank_mask:0xf")
        A("  v_mov_b32 v41, v40")
        A("  s_nop 1")
        A("  v_permlane16_swap_b32 v40, v41")
        A(f"  {op} v40, v40, v41")
        A("  v_mov_b32 v41, v40")
        A("  s_nop 1")
        A("  v_permlane32_swap_b32 v40, v41")
        A(f"  {op} v40, v40, v41")
    xred("v_max_f32")
    for k in range(3):
        A(f"  v_sub_f32 v{16+4*k}, v{16+4*k}, v40")
    for k in range(3):
        A(f"  v_exp_f32 v{16+4*k}, v{16+4*k}")
    A("  v_mul_f32 v40, v16, v17")
    A("  v_fmac_f32 v40, v20, v21")
    A("  v_fmac_f32 v40, v24, v25")
    xred("v_add_f32")
    A("  v_rcp_f32 v40, v40")
    A("  s_mov_b32 s89, 1")
    for k in range(3):
        A(f"  v_mul_f32 v{16+4*k}, v{16+4*k}, v40")
    stamp(9)
    A("L_chk:")
    A("  s_sub_u32 s96, s96, 1")
    A("  s_waitcnt vmcnt(0)")
    A("  s_cbranch_scc1 L_switch")
    check(28)
    if psleep:
        A("  s_cbranch_vccz L_o_done")
        A(f"  s_sleep {psleep}")
        A("  s_branch L_o")
    else:
        A("  s_cbranch_vccnz L_o")
    A("L_o_done:")
    stamp(10)
    for i in range(4):
        A(f"  v_mul_f32 v{28+i}, v16, v{28+i}")
    for k in (1, 2):
        for i in range(4):
            A(f"  v_fmac_f32 v{28+i}, v{16+4*k}, v{28+4*k+i}")
    A("  s_nop 0")
    A("  v_permlane16_swap_b32 v28, v29")
    A("  v_permlane16_swap_b32 v30, v31")
    A("  v_add_f32 v28, v28, v29")
    A("  v_add_f32 v30, v30, v31")
    A("  s_nop 1")
    A("  v_permlane32_swap_b32 v28, v30")
    A("  v_add_f32 v28, v28, v30")
    A("  s_nop 1")
    A("  v_add_f32_dpp v28, v28, v28 row_ror:8 row_mask:0xf bank_mask:0xf")
    A("  s_mov_b32 exec_lo, 0x00ff00ff")
    A("  s_mov_b32 exec_hi, 0x00ff00ff")
    A("  v_cvt_pk_bf16_f32 v28, v28, v28")
    A(f"  global_store_short v9, v28, s[14:15] {outflags}")
    A("L_cend:")
    if stamps:
        A("  s_waitcnt vmcnt(0)")
        stamp(11)
        A("  s_sub_u32 s96, %d, s96" % n1)
        A(f"  v_writelane_b32 v{VST}, s96, 29")
        stamp_store()
    A("  s_endpgm")
    A("L_retry_ml:")
    A("  s_sub_u32 s96, s96, 1")
    A("  s_waitcnt vmcnt(0)")
    A("  s_cbranch_scc0 L_ml")
    A("L_switch:")
    A("  s_cmp_lg_u32 s78, 0")
    A("  s_cbranch_scc1 L_cend")
    A("  s_mov_b32 s78, 1")
    A(f"  s_mov_b32 s96, {SPIN}")
    for k in range(6):
        A(f"  v_add_u32 v{10+k}, {BOFF}, v{10+k}")
    A("  s_cmp_lg_u32 s89, 0")
    A("  s_cbranch_scc1 L_o")
    A("  s_branch L_ml")

    A("L_cons:")
    stamp(4)
    A(f"  s_mov_b32 s96, {SPIN}")
    A("  global_load_dword v44, v8, s[16:17] sc1")
    A("  s_and_b32 s93, s2, 7               ; x")
    A("  s_lshl_b32 s85, s93, 1")
    A("  s_bfe_u32 s86, s2, 0x40003         ; slice")
    A("  s_sub_u32 s92, 31, s79")
    A("  s_sub_u32 s90, s79, 1")
    A("  s_lshl_b32 s91, s79, 3")
    A("  s_bitcmp1_b32 s2, 7")
    A("  s_cselect_b32 s92, s92, s90        ; n-1")
    A("  s_cselect_b32 s91, s91, 0")
    A("  s_addc_u32 s85, s85, 0")
    A("  s_add_u32 s91, s91, s93")
    A("  v_lshrrev_b32 v2, 3, v1            ; pp")
    A("  v_and_b32 v9, 7, v1                ; q")
    A("  v_add_u32 v3, 8, v2")
    A("  v_add_u32 v5, 16, v2")
    A("  v_cmp_lt_u32 s[52:53], s92, v3     ; absent k=1")
    A("  v_cmp_lt_u32 s[54:55], s92, v5     ; absent k=2")
    A("  v_min_u32 v3, s92, v3")
    A("  v_min_u32 v5, s92, v5")
    A("  s_bfe_u32 s94, s86, 0x20001        ; h")
    A("  s_lshl_b32 s95, s94, 4")
    A("  s_lshl_b32 s97, s86, 7")
    A("  v_lshl_add_u32 v7, v9, 4, s97")
    for k, r in enumerate([2, 3, 5]):
        A(f"  v_lshl_add_u32 v{r}, v{r}, 3, s91")
        A(f"  v_mul_u32_u24 v{r}, {rec}, v{r}")
        A(f"  v_add_u32 v{10+k}, v{r}, v7           ; O addr")
        A(f"  v_add_u32 v{13+k}, s95, v{r}")
    A("  s_lshr_b32 s95, s94, 1")
    A("  s_lshl_b32 s95, s95, 13")
    A("  s_and_b32 s97, s86, 3")
    A("  s_lshl_b32 s97, s97, 7             ; (h&1)*256 + k*128")
    A("  s_add_u32 s95, s95, s97")
    A("  s_lshl_b32 s97, s85, 9")
    A("  s_add_u32 s95, s95, s97")
    A("  s_and_b32 s97, s86, 8              ; plane*8")
    A("  s_add_u32 s95, s95, s97")
    A("  v_lshrrev_b32 v7, 4, v1            ; rho")
    A("  v_lshlrev_b32 v7, 1, v7")
    A("  v_lshl_add_u32 v9, v9, 4, v7")
    A("  v_add_u32 v9, s95, v9")
    A("  v_mul_u32_u24 v2, 40, v1")
    A("  v_add_u32 v3, s81, v4")
    A(f"  v_mov_b32 v5, {f32(-3e38)}")
    A(f"  s_mov_b32 s87, {f32(C)}")
    A("  s_mov_b32 s88, 0xffffff00")
    A("  s_mov_b32 s89, 0")
    A("  s_branch L_non")
    A("L_general:")
    A(f"  ds_read_b128 v[{S}:{S+3}], v3 offset:{LDS_DESC+32}")
    A(f"  v_readfirstlane_b32 s74, v{D+3}")
    mkmask(NUG)
    A(f"  s_mul_i32 s90, s84, {NUG}")
    A("  v_add_u32 v8, s90, v1")
    A("  s_waitcnt vmcnt(0) lgkmcnt(0)")
    A(f"  v_add_u32 v8, v8, v{S+2}             ; unit")
    A("  v_lshrrev_b32 v9, 2, v8            ; i")
    A(f"  v_cmp_lt_u32 vcc, v9, v{S}")
    A(f"  v_add_u32 v10, v9, v{S+1}")
    A("  s_nop 0")
    A("  v_cndmask_b32 v10, v10, v9, vcc")
    A("  v_and_b32 v10, 0x1ff, v10")
    A("  v_lshlrev_b32 v10, 2, v10")
    A(f"  ds_read_b32 v10, v10 offset:{LDS_TAB}")
    A(f"  v_cmp_lt_u32 vcc, v8, v{S+3}")
    A("  v_and_b32 v9, 3, v8")
    A("  v_lshl_add_u32 v9, v9, 14, s91")
    A(f"  v_mov_b32 v11, {KVBYTES}")
    A("  s_waitcnt lgkmcnt(0)")
    A("  v_min_u32 v10, 384, v10")
    A("  v_lshl_add_u32 v9, v10, 16, v9")
    A("  v_cndmask_b32 v9, v11, v9, vcc")
    A("  s_nop 0")
    for j in range(NUG):
        A(f"  v_readlane_b32 s{SO+j}, v9, {j}")
    A("  s_and_b32 s75, s74, 1")
    A("  s_bfe_u32 s76, s74, 0x10001")
    A("  s_mul_i32 s75, s75, 0x00ff00ff")
    A("  s_mul_i32 s76, s76, 0xff00ff00")
    A("  s_or_b32 s75, s75, s76")
    for j in range(NUG):
        r = X + 4 * j
        A(f"  buffer_load_dwordx4 v[{r}:{r+3}], v{VK}, s[20:23], s{SO+j} offen{NT}")
    A("  s_mov_b32 exec_lo, s75")
    A("  s_mov_b32 exec_hi, s75")
    for i in range(4):
        A(f"  v_mov_b32 v{Q+i}, 0")
    A("  s_mov_b64 exec, -1")
    A("  s_waitcnt vmcnt(0)")
    tg = lambda j: Y + 4 * (j % 4)
    for g in range(NUG // 4):
        js = list(range(4 * g, 4 * g + 4))
        qk_mfma(js, kreg, tg)
        A("  s_nop 4")
        qk_rest(js, tg)
    arrive()
    for j in range(NUG):
        r = X + 4 * j
        A(f"  buffer_load_dwordx4 v[{r}:{r+3}], v{VV}, s[24:27], s{SO+j} offen{NT}")
    waitmax("g")
    pcalc(NUG)
    pv(NUG, kreg)
    A("  s_branch L_tail")
    A('.section .rodata,"a"')
    A(".p2align 6")
    A(f".amdhsa_kernel {NAME}_kernel")
    A("  .amdhsa_next_free_vgpr 168")
    A("  .amdhsa_next_free_sgpr 102")
    A("  .amdhsa_accum_offset 168")
    A("  .amdhsa_group_segment_fixed_size 0")
    A("  .amdhsa_kernarg_size 64")
    A("  .amdhsa_user_sgpr_count 2")
    A("  .amdhsa_user_sgpr_kernarg_segment_ptr 1")
    A("  .amdhsa_system_sgpr_workgroup_id_x 1")
    A(".end_amdhsa_kernel")
    return "\n".join(L) + "\n"

if __name__ == "__main__":
    import argparse
    ap = argparse.ArgumentParser()
    ap.add_argument("-o", required=True)
    ap.add_argument("--stamps", action="store_true")
    ap.add_argument("--no-nt", action="store_true")
    ap.add_argument("--no-codepf", action="store_true")
    ap.add_argument("--poll", default="sc1")
    ap.add_argument("--pub", default="sc1")
    ap.add_argument("--out", default="")
    ap.add_argument("--cnts", default="14,18,16,16")
    ap.add_argument("--loc", default="")
    ap.add_argument("--n1", type=int, default=64)
    ap.add_argument("--xs", default="")
    ap.add_argument("--rec", type=int, default=2304)
    ap.add_argument("--psleep", type=int, default=0)
    a = ap.parse_args()
    open(a.o, "w").write(gen(a.stamps, not a.no_nt, a.poll, not a.no_codepf, a.pub,
                             tuple(int(x) for x in a.cnts.split(",")), a.out, tuple(a.xs.split(",")), a.rec, a.psleep, a.loc, a.n1))
```

```python
import sys, math, struct

NAME = "standalone__paged_block_table_kv_radixattention__decode"
HDR = open("cdna_kernels/%s.s.ref" % NAME).read().split("; Override launch")[0]

def f32(x):
    return "0x%08x" % struct.unpack("<I", struct.pack("<f", x))[0]

W = 10
NU = 9
NUG = 16
KVBYTES = 25165824
SLOT = 2048
LDS_TAB = W * SLOT
LDS_DESC = LDS_TAB + 2048
LDS_TAG = LDS_DESC + 48
LDS_INIT = LDS_DESC + 64
LDS_MAX = LDS_INIT
LDS_CNT = LDS_INIT + 64
LDS_CNT2 = LDS_INIT + 68
LDS_L = LDS_INIT + 80
LDS_TOTAL = LDS_INIT + 512
SPIN = 1 << 15

def gen(stamps=False, nt=True, pollflags="sc1", codepf=True, pubflags="sc1", cnts=(14, 18, 16, 16),
        outflags="", xs=(), rec=2304, psleep=0, locflags="", n1=64):
    L = []
    A = L.append
    C = (128 ** -0.5) * math.log2(math.e)
    NT = " nt" if nt else ""
    VST = 167
    BOFF = 1 << 20
    assert cnts[0] + cnts[1] == 32 and cnts[2] + cnts[3] == 32 and -(-1212 // min(cnts)) <= W * NU and -(-2048 // min(cnts)) <= W * NUG and max(cnts) <= 24
    magic = [(1 << 24) // c + 1 for c in cnts]
    def stamp(k):
        if not stamps: return
        A("  s_memrealtime s[98:99]")
        A("  s_waitcnt lgkmcnt(0)")
        A(f"  v_writelane_b32 v{VST}, s98, {k}")
    def stamp_store():
        if not stamps: return
        A("  s_getreg_b32 s98, hwreg(HW_REG_XCC_ID)")
        A("  s_getreg_b32 s99, hwreg(HW_REG_HW_ID)")
        A(f"  v_writelane_b32 v{VST}, s98, 30")
        A(f"  v_writelane_b32 v{VST}, s99, 31")
        A("  s_lshl_b32 s98, s2, 4")
        A("  s_add_u32 s98, s98, s84")
        A("  s_lshl_b32 s98, s98, 7")
        A("  s_add_u32 s98, s98, 0x200000")
        A("  s_mov_b64 exec, -1")
        A("  v_lshl_add_u32 v14, v1, 2, s98")
        A("  s_mov_b32 exec_hi, 0")
        A(f"  global_store_dword v14, v{VST}, s[18:19]")
    VK, VV = 4, 5
    VMSK = 6
    D = 8
    Q = 16
    VM, VL, VNEG, VAMAX, VH16, VSLOT, VG, VB = 20, 21, 22, 23, 24, 25, 26, 27
    O = 28
    S = 36
    Y = 52
    X = 88
    SO = 32
    A(HDR.rstrip())
    A(f"; @launch grid=(256,1,1) block=({64*(W+1)},1,1) lds={LDS_TOTAL}")
    A('.amdgcn_target "amdgcn-amd-amdhsa--gfx950"')
    A(".text")
    A(f".globl {NAME}_kernel")
    A(".p2align 12")
    A(".p2align 8")
    A(f".type {NAME}_kernel,@function")
    A(f"{NAME}_kernel:")
    A("  s_load_dwordx16 s[4:19], s[0:1], 0")
    A("  s_getpc_b64 s[82:83]")
    A("  v_lshrrev_b32 v14, 6, v0")
    A("  v_and_b32 v1, 63, v0")
    A("  v_readfirstlane_b32 s84, v14")
    A("  s_cmp_ge_u32 s2, 256")
    A("  s_cbranch_scc1 L_end")
    if stamps:
        A(f"  v_mov_b32 v{VST}, 0")
        A("  s_memrealtime s[98:99]")
    A("  s_and_b32 s85, s2, 7               ; group x")
    A("  s_lshr_b32 s90, s2, 3              ; j")
    A("  s_bitcmp0_b32 s2, 0")
    A(f"  s_cselect_b32 s79, {cnts[0]}, {cnts[2]}         ; nA")
    A(f"  s_mov_b32 s80, {magic[0]}")
    A(f"  s_cselect_b32 s80, s80, {magic[2]}")
    A(f"  s_mov_b32 s91, {magic[1]}")
    A(f"  s_cselect_b32 s91, s91, {magic[3]}")
    A("  s_lshl_b32 s85, s85, 1")
    A("  s_sub_u32 s86, s90, s79")
    A("  s_cmp_ge_u32 s90, s79")
    A("  s_cselect_b32 s86, s86, s90        ; idx")
    A("  s_cselect_b32 s80, s91, s80        ; magic")
    A("  s_addc_u32 s85, s85, 0             ; head")
    A("  s_lshl_b32 s91, s85, 8             ; head*256")
    A(f"  s_mul_i32 s81, s2, {rec}")
    A(f"  s_cmp_eq_u32 s84, {W}")
    A("  s_cbranch_scc1 L_helper")
    A(f"  s_mul_i32 s92, s86, {1212*256}")
    A(f"  s_add_u32 s93, s92, {1212*256}")
    A("  s_mul_hi_u32 s92, s92, s80         ; lo")
    A("  s_mul_hi_u32 s93, s93, s80         ; hi")
    A(f"  s_mul_i32 s94, s84, {NU}")
    A("  s_add_u32 s94, s94, s92")
    A("  v_add_u32 v8, s94, v1              ; unit")
    A("  v_add_u32 v9, 108, v8")
    A("  v_cmp_gt_u32 vcc, 916, v8")
    A(f"  v_lshrrev_b32 v{VG}, 4, v1           ; g")
    A("  v_and_b32 v3, 15, v1               ; n")
    A("  v_cndmask_b32 v9, v9, v8, vcc")
    A("  v_cmp_gt_u32 vcc, s93, v8")
    A("  v_lshl_add_u32 v9, v9, 14, s91")
    A(f"  v_mov_b32 v10, {KVBYTES}")
    A("  v_cndmask_b32 v9, v10, v9, vcc")
    A("  v_and_b32 v14, 3, v1               ; u")
    A("  v_lshrrev_b32 v15, 2, v3           ; t = h")
    for j in range(NU):
        A(f"  v_readlane_b32 s{SO+j}, v9, {j}")
    A(f"  v_lshlrev_b32 v{VK}, 6, v{VG}")
    A(f"  v_lshl_add_u32 v{VK}, v14, 4, v{VK}      ; 64g + 16u")
    A(f"  v_lshrrev_b32 v{VB}, 3, v3           ; bsel")
    A("  v_and_b32 v12, 1, v15              ; hh")
    A(f"  v_lshl_add_u32 v12, v12, 8, v{VK}")
    A(f"  v_lshl_add_u32 v12, v{VB}, 13, v12")
    A("  s_lshl_b32 s90, s85, 9")
    A("  v_add_u32 v12, s90, v12            ; q offset")
    A(f"  v_lshl_add_u32 v{VK}, v15, 12, v{VK}     ; voffK = t*4096 + 64g + 16u")
    A(f"  s_mov_b32 s22, {KVBYTES}")
    A("  s_mov_b32 s23, 0x20000")
    A("  s_waitcnt lgkmcnt(0)")
    if stamps:
        A(f"  v_writelane_b32 v{VST}, s98, 0")
    stamp(1)
    A("  s_mov_b64 s[20:21], s[6:7]")
    A(f"  global_load_dwordx4 v[{Q}:{Q+3}], v12, s[4:5]")
    for j in range(NU):
        r = X + 4 * j
        A(f"  buffer_load_dwordx4 v[{r}:{r+3}], v{VK}, s[20:23], s{SO+j} offen{NT}")
    A("  s_branch L_comp2")

    A("L_helper:")
    A("  s_setprio 3")
    A("  s_memrealtime s[60:61]")
    if codepf:
        A("  v_lshlrev_b32 v2, 6, v1")
        A("  global_load_dword v3, v2, s[82:83]")
    A("  v_lshlrev_b32 v4, 4, v1            ; lane*16")
    A("  v_lshlrev_b32 v6, 2, v1            ; lane*4")
    A(f"  v_mov_b32 v7, {f32(-1e28)}")
    A("  v_cmp_gt_u32 vcc, 16, v1")
    A("  v_mov_b32 v8, 0")
    A("  s_mov_b32 s69, 0")
    A("  v_cndmask_b32 v7, 0, v7, vcc")
    A(f"  ds_write_b32 v6, v7 offset:{LDS_INIT}")
    A("  s_waitcnt lgkmcnt(0)")
    if stamps:
        A(f"  v_writelane_b32 v{VST}, s98, 0")
    stamp(1)
    A("  global_load_dwordx4 v[12:15], v4, s[10:11]")
    A("  global_load_dwordx4 v[16:19], v4, s[10:11] offset:1024")
    A("  s_load_dwordx2 s[32:33], s[12:13], 0")
    A("  s_cmp_lg_u32 s2, 0")
    A("  s_cbranch_scc1 L_nononce")
    A("  s_lshr_b64 s[60:61], s[60:61], 1")
    A("  s_bitset1_b32 s60, 0")
    A("  s_bfe_u32 s61, s60, 0x10008")
    A("  s_xor_b32 s60, s60, s61")
    A("  v_mov_b32 v9, s60")
    A("  s_mov_b64 exec, 1")
    A("  global_store_dword v8, v9, s[16:17] sc1")
    A("  s_mov_b64 exec, -1")
    A("  s_waitcnt vmcnt(1)")
    A("L_nononce:")
    A("  s_waitcnt lgkmcnt(0)")
    for b in range(2):
        s = 32 + b
        A(f"  s_cmp_lt_i32 s{s}, 1")
        A(f"  s_cselect_b32 s34, {1<<b}, 0")
        A(f"  s_cselect_b32 s{s}, 4096, s{s}")
        A(f"  s_or_b32 s69, s69, s34")
        A(f"  s_min_i32 s{s}, s{s}, 4096")
        A(f"  s_add_u32 s{38+b}, s{s}, 15")
        A(f"  s_lshr_b32 s{38+b}, s{38+b}, 4     ; n{b}")
    A("  s_cmp_eq_u32 s2, 0")
    A("  s_cbranch_scc1 L_btok")
    A("  s_waitcnt vmcnt(0)")
    A("L_btok:")
    stamp(2)
    A(f"  ds_write_b128 v4, v[12:15] offset:{LDS_TAB}")
    A(f"  ds_write_b128 v4, v[16:19] offset:{LDS_TAB+1024}")
    A("  v_cmp_ne_u64 s[34:35], v[12:13], v[16:17]")
    A("  v_cmp_ne_u64 s[36:37], v[14:15], v[18:19]")
    A("  s_nop 1")
    A("  s_or_b64 s[34:35], s[34:35], s[36:37]")
    A("  s_ff1_i32_b64 s34, s[34:35]")
    A("  s_lshl_b32 s34, s34, 2")
    A("  s_min_u32 s34, s34, s38")
    A("  s_min_u32 s34, s34, s39            ; P")
    A("  s_add_u32 s35, s38, s39")
    A("  s_sub_u32 s35, s35, s34            ; T")
    A("  s_cmp_lg_u32 s35, 303")
    A("  s_cselect_b32 s41, 4, 0")
    A("  s_or_b32 s69, s69, s41")
    A("  s_lshl_b32 s35, s35, 10            ; 4T*256")
    A("  s_mul_i32 s36, s35, s86")
    A("  s_add_u32 s37, s36, s35")
    A("  s_mul_hi_u32 s36, s36, s80         ; lo")
    A("  s_mul_hi_u32 s37, s37, s80         ; hi")
    A("  s_sub_u32 s41, s34, s38")
    A("  s_add_u32 s41, s41, 256            ; P - n0 + 256")
    A("  s_lshr_b32 s40, s36, 2")
    A("  v_add_u32 v12, s40, v1             ; i")
    A("  v_cmp_gt_u32 vcc, s38, v12         ; i < n0")
    A("  v_add_u32 v13, s41, v12")
    A("  v_add_u32 v14, 27, v12")
    A("  v_cndmask_b32 v13, v13, v12, vcc   ; e")
    A("  v_cmp_gt_u32 vcc, 229, v12")
    A("  v_and_b32 v13, 0x1ff, v13")
    A("  v_lshlrev_b32 v13, 2, v13")
    A("  v_cndmask_b32 v14, v14, v12, vcc")
    A("  v_lshlrev_b32 v12, 2, v12")
    A("  s_waitcnt lgkmcnt(0)")
    A(f"  ds_read_b32 v13, v13 offset:{LDS_TAB}")
    A("  v_cmp_gt_u32 s[42:43], s37, v12    ; 4i < hi")
    A("  s_lshl_b32 s44, s36, 2")
    A("  s_sub_u32 s44, 3, s44              ; adj")
    A("  s_lshl_b32 s45, s37, 2             ; 4hi")
    A("  s_min_u32 s46, s32, s45")
    A("  s_add_u32 s46, s46, s44            ; a0'")
    A("  s_lshl_b32 s47, s34, 4             ; 16P")
    A("  s_min_u32 s48, s47, s33")
    A("  s_min_u32 s48, s48, s45")
    A("  s_add_u32 s48, s48, s44            ; a1'")
    A("  s_lshl_b32 s49, s38, 4             ; 16n0")
    A("  s_sub_u32 s50, s49, s47")
    A("  s_add_u32 s50, s50, s33")
    A("  s_min_u32 s50, s50, s45")
    A("  s_add_u32 s50, s50, s44            ; c1'")
    A("  s_add_u32 s49, s49, s44            ; b1'")
    A("  v_mov_b32 v30, 0")
    for lane, sr in [(0, "s46"), (4, "s48"), (5, "s49"), (6, "s50"), (8, "s38"), (9, "s41"), (10, "s36"), (11, "s37")]:
        A(f"  v_writelane_b32 v30, {sr}, {lane}")
    A("  s_waitcnt lgkmcnt(0)")
    A("  v_cmp_ne_u32 vcc, v13, v14")
    A("  s_and_b64 vcc, vcc, s[42:43]")
    A("  s_cselect_b32 s41, 4, 0")
    A("  s_or_b32 s69, s69, s41")
    A("  v_writelane_b32 v30, s69, 3")
    A("  v_writelane_b32 v30, s69, 7")
    A("  s_mov_b64 exec, 0xfff")
    A(f"  ds_write_b32 v6, v30 offset:{LDS_DESC}")
    A("  s_mov_b64 exec, -1")
    A("  s_waitcnt lgkmcnt(0)")
    stamp(3)
    A("  s_barrier                          ; #0")
    A("  s_branch L_cons")

    A("L_comp2:")
    A(f"  v_lshlrev_b32 v{VV}, 12, v{VG}")
    A(f"  v_lshl_add_u32 v{VV}, v3, 4, v{VV}       ; voffV = g*4096 + 16n")
    A("  s_mov_b64 s[24:25], s[8:9]")
    A(f"  s_mov_b32 s26, {KVBYTES}")
    A("  s_mov_b32 s27, 0x20000")
    A(f"  v_lshlrev_b32 v{VB}, 4, v{VB}")
    A("  v_and_b32 v13, 1, v14")
    A("  v_lshlrev_b32 v13, 4, v13")
    A("  v_mov_b32 v2, 0xffff")
    A("  v_lshlrev_b32 v13, v13, v2         ; 0xffff << 16*(u&1)")
    A("  v_cmp_gt_u32 vcc, 2, v14")
    A(f"  v_lshlrev_b32 v{VH16}, 4, v15        ; h*16")
    A(f"  v_lshl_add_u32 v{VAMAX}, v{VG}, 2, v{VH16}   ; h*16+g*4")
    A("  v_cndmask_b32 v12, 0, v13, vcc     ; mask0")
    A("  v_xor_b32 v13, v12, v13            ; mask1")
    A(f"  v_mov_b32 v{VM}, {f32(-1e28)}")
    A(f"  v_mov_b32 v{VNEG}, {f32(-1e30)}")
    A(f"  v_mov_b32 v{VL}, 0")
    for i in range(8):
        A(f"  v_mov_b32 v{O+i}, 0")
    A("  s_lshl_b32 s90, s84, 11")
    A(f"  v_lshl_add_u32 v{VSLOT}, v1, 4, s90")
    A(f"  s_mov_b32 s87, {f32(C)}")
    A("  s_mov_b32 s88, 0xffffff00")
    A("  v_mov_b32 v2, 1")
    A("  v_mov_b32 v3, 0")
    stamp(2)
    A("  s_barrier                          ; #0")
    A(f"  ds_read_b128 v[{D}:{D+3}], v{VB} offset:{LDS_DESC}")
    stamp(3)

    def mkmask(nu):
        A(f"  s_mul_i32 s90, s84, {4*nu}")
        A(f"  v_add_u32 v14, s90, v{VG}            ; B'")
        for k in range(3):
            A(f"  v_sub_u32 v{D+k}, v{D+k}, v14")
        for k in range(3):
            A(f"  v_ashrrev_i32 v{D+k}, 2, v{D+k}")
        for k in range(3):
            A(f"  v_med3_i32 v{D+k}, v{D+k}, 0, 31")
        for k in range(3):
            A(f"  v_bfm_b32 v{D+k}, v{D+k}, 0")
        A(f"  v_bfi_b32 v{VMSK}, v{D+1}, 0, v{D+2}     ; c & ~b")
        A(f"  v_or_b32 v{VMSK}, v{VMSK}, v{D}")
    def qk_mfma(js, kreg, treg):
        for j in js:
            A(f"  v_mfma_f32_16x16x32_bf16 v[{treg(j)}:{treg(j)+3}], v[{kreg(j)}:{kreg(j)+3}], v[{Q}:{Q+3}], 0")
    def qk_rest(js, treg):
        assert len(js) >= 3
        for k in range(4):
            for j in js:
                q = f"quad_perm:[{k},{k},{k},{k}] row_mask:0xf bank_mask:0xf"
                if k == 0:
                    A(f"  v_mov_b32_dpp v{S+j}, v{treg(j)} {q}")
                else:
                    A(f"  v_add_f32_dpp v{S+j}, v{treg(j)+k}, v{S+j} {q}")
        for j in js:
            A(f"  v_bfe_i32 v{treg(j)}, v{VMSK}, {j}, 1")
        for j in js:
            A(f"  v_bfi_b32 v{S+j}, v{treg(j)}, v{S+j}, v{VNEG}")
        js = list(js)
        while js:
            if len(js) >= 2:
                A(f"  v_max3_f32 v{VM}, v{S+js[0]}, v{S+js[1]}, v{VM}"); js = js[2:]
            else:
                A(f"  v_max_f32 v{VM}, v{S+js[0]}, v{VM}"); js = js[1:]
    def arrive():
        A("  s_mov_b32 exec_lo, 0x11111111")
        A("  s_mov_b32 exec_hi, 0x11111111")
        A(f"  ds_max_f32 v{VAMAX}, v{VM} offset:{LDS_MAX}")
        A("  s_mov_b64 exec, 1")
        A(f"  ds_add_u32 v3, v2 offset:{LDS_CNT}")
        A("  s_mov_b64 exec, -1")
    def waitmax(tag):
        A(f"L_wm{tag}:")
        A(f"  ds_read_b32 v{Y+4}, v3 offset:{LDS_CNT}")
        A(f"  ds_read_b128 v[{Y}:{Y+3}], v{VH16} offset:{LDS_MAX}")
        A("  s_waitcnt lgkmcnt(0)")
        A(f"  v_cmp_ne_u32 vcc, {W}, v{Y+4}")
        A(f"  s_cbranch_vccnz L_wm{tag}")
        A(f"  v_max3_f32 v{VM}, v{Y}, v{Y+1}, v{Y+2}")
        A(f"  v_max_f32 v{VM}, v{VM}, v{Y+3}")
        A(f"  v_mul_f32 v{VM}, s87, v{VM}          ; M*c")
        A(f"  v_and_b32 v{VM}, s88, v{VM}")
    def pcalc(nu):
        for j in range(nu):
            A(f"  v_fma_f32 v{S+j}, v{S+j}, s87, -v{VM}")
        for j in range(nu):
            A(f"  v_exp_f32 v{S+j}, v{S+j}")
        for j in range(nu):
            A(f"  v_add_f32 v{VL}, v{VL}, v{S+j}")
            A(f"  v_cvt_pk_bf16_f32 v{S+j}, v{S+j}, v{S+j}")
        A(f"  v_mov_b32 v14, v{VL}")
        A("  v_mul_u32_u24 v15, 40, v15         ; h*40")
        A("  s_lshl_b32 s90, s84, 2")
        A(f"  v_permlane16_swap_b32 v{VL}, v14")
        A(f"  v_add_f32 v{VL}, v{VL}, v14")
        A(f"  v_mov_b32 v14, v{VL}")
        A("  v_add_u32 v15, s90, v15")
        A("  s_nop 0")
        A(f"  v_permlane32_swap_b32 v{VL}, v14")
        A(f"  v_add_f32 v{VL}, v{VL}, v14")
        A("  s_mov_b64 exec, 0x1111")
        A(f"  ds_write_b32 v15, v{VL} offset:{LDS_L}")
        A("  s_mov_b64 exec, 1")
        A(f"  ds_add_u32 v3, v2 offset:{LDS_CNT2}")
        A("  s_mov_b64 exec, -1")
        for j in range(nu):
            A(f"  v_and_b32 v{Y+2*j}, v{S+j}, v12")
            A(f"  v_and_b32 v{Y+2*j+1}, v{S+j}, v13")
        A("  s_lshl_b32 s90, s84, 10")
        A("  v_lshl_add_u32 v14, v1, 4, s90")
        A("  v_add_u32 v15, s81, v14")
        A(f"  v_add_u32 v12, {BOFF}, v15")
    def pv(nu, vreg):
        for j in range(nu):
            A(f"  s_waitcnt vmcnt({nu-1-j})")
            A(f"  v_mfma_f32_16x16x16_bf16 v[{O}:{O+3}], v[{Y+2*j}:{Y+2*j+1}], v[{vreg(j)}:{vreg(j)+1}], v[{O}:{O+3}]")
            A(f"  v_mfma_f32_16x16x16_bf16 v[{O+4}:{O+7}], v[{Y+2*j}:{Y+2*j+1}], v[{vreg(j)+2}:{vreg(j)+3}], v[{O+4}:{O+7}]")

    kreg = lambda j: X + 4 * j
    treg = lambda j: Y + 4 * j
    A("  s_waitcnt vmcnt(6)")
    qk_mfma([0, 1, 2], kreg, treg)
    A("  s_waitcnt lgkmcnt(0)")
    A(f"  v_cmp_ne_u32 vcc, 0, v{D+3}")
    A("  s_cbranch_vccnz L_general")
    mkmask(NU)
    A("  s_waitcnt vmcnt(3)")
    qk_mfma([3, 4, 5], kreg, treg)
    qk_rest([0, 1, 2], treg)
    A("  s_waitcnt vmcnt(0)")
    stamp(4)
    qk_mfma([6, 7, 8], kreg, treg)
    qk_rest([3, 4, 5], treg)
    qk_rest([6, 7, 8], treg)
    arrive()
    stamp(5)
    for j in range(NU):
        r = X + 36 + 4 * j
        A(f"  buffer_load_dwordx4 v[{r}:{r+3}], v{VV}, s[24:27], s{SO+j} offen{NT}")
    stamp(6)
    waitmax("f")
    stamp(7)
    pcalc(NU)
    stamp(8)
    pv(NU, lambda j: X + 36 + 4 * j)
    A("L_tail:")
    stamp(9)
    A("  s_cmp_gt_u32 s84, 1")
    A("  s_nop 5")
    A(f"  ds_write_b128 v{VSLOT}, v[{O}:{O+3}]")
    A(f"  ds_write_b128 v{VSLOT}, v[{O+4}:{O+7}] offset:1024")
    A("  s_waitcnt lgkmcnt(0)")
    A("  s_barrier                          ; #2")
    A("  s_cbranch_scc1 L_fin")
    for w in range(W):
        A(f"  ds_read_b128 v[{X+4*w}:{X+4*w+3}], v14 offset:{w*SLOT}")
    A(f"  ds_read_b128 v[{D}:{D+3}], v3 offset:{LDS_TAG}")
    for w in range(1, W):
        A(f"  s_waitcnt lgkmcnt({W-w})")
        A(f"  v_pk_add_f32 v[{X}:{X+1}], v[{X}:{X+1}], v[{X+4*w}:{X+4*w+1}]")
        A(f"  v_pk_add_f32 v[{X+2}:{X+3}], v[{X+2}:{X+3}], v[{X+4*w+2}:{X+4*w+3}]")
    A("  s_waitcnt lgkmcnt(0)")
    for k in range(4):
        A(f"  v_and_or_b32 v{X+k}, v{X+k}, s88, v{D+k}")
    if "noloc" not in xs:
        A(f"  global_store_dwordx4 v15, v[{X}:{X+3}], s[18:19] {locflags}")
    if "nopub" not in xs:
        A(f"  global_store_dwordx4 v12, v[{X}:{X+3}], s[18:19] {pubflags}")
    A("L_fin:")
    stamp(10)
    stamp_store()
    A("L_end:")
    A("  s_endpgm")

    A("L_non:")
    A("  s_waitcnt vmcnt(0)")
    A("  v_cmp_eq_u32 vcc, 0, v44")
    A("  s_cbranch_vccz L_non_ok")
    A("  s_sleep 8")
    A("  global_load_dword v44, v8, s[16:17] sc1")
    A("  s_sub_u32 s96, s96, 1")
    A("  s_cbranch_scc0 L_non")
    A("  s_waitcnt vmcnt(0)")
    A("L_non_ok:")
    stamp(5)
    if "tlbw" in xs:
        A("  s_mov_b64 exec, 1")
        A("  global_load_dword v72, v3, s[18:19] offset:2048")
        A("  global_load_ushort v73, v9, s[14:15]")
        A("  s_mov_b64 exec, -1")
    if "prepoll" in xs:
        for k in range(3):
            A(f"  global_load_dwordx4 v[{60+4*k}:{63+4*k}], v{10+k}, s[18:19] {pollflags}")
    if "prepollml" in xs:
        for k in range(3):
            A(f"  global_load_dwordx4 v[{48+4*k}:{51+4*k}], v{13+k}, s[18:19] offset:2048 {pollflags}")
    A("  v_bfe_u32 v45, v44, 8, 8")
    A("  v_bfe_u32 v46, v44, 16, 8")
    A("  v_lshrrev_b32 v47, 24, v44")
    A("  v_and_b32 v44, 0xff, v44")
    A("  s_mov_b64 exec, 1")
    A(f"  ds_write_b128 v8, v[44:47] offset:{LDS_TAG}")
    A("  s_mov_b64 exec, 0xff" if "mlfull" in xs else "  s_mov_b64 exec, 0xf")
    A("L_lw:")
    A("  s_sleep 2")
    A(f"  ds_read_b32 v40, v8 offset:{LDS_CNT2}")
    A(f"  ds_read_b128 v[16:19], v4 offset:{LDS_MAX}")
    for k in range(5):
        A(f"  ds_read_b64 v[{20+2*k}:{21+2*k}], v2 offset:{LDS_L+8*k}")
    A("  s_waitcnt lgkmcnt(0)")
    A(f"  v_cmp_ne_u32 vcc, {W}, v40")
    A("  s_cbranch_vccnz L_lw")
    A("  v_max3_f32 v16, v16, v17, v18")
    A("  v_pk_add_f32 v[20:21], v[20:21], v[22:23]")
    A("  v_pk_add_f32 v[24:25], v[24:25], v[26:27]")
    A("  v_max_f32 v16, v16, v19")
    A("  v_pk_add_f32 v[20:21], v[20:21], v[28:29]")
    A("  v_mul_f32 v16, s87, v16")
    A("  v_pk_add_f32 v[20:21], v[20:21], v[24:25]")
    A("  v_and_or_b32 v16, v16, s88, v44")
    A("  v_add_f32 v17, v20, v21")
    A("  v_mov_b32 v18, v46")
    A("  v_mov_b32 v19, v47")
    A("  v_and_or_b32 v17, v17, s88, v45")
    if "noloc" not in xs and "nomlloc" not in xs:
        A(f"  global_store_dwordx4 v3, v[16:19], s[18:19] offset:2048 {locflags}")
    A(f"  v_add_u32 v3, {BOFF}, v3")
    if "nomlpub" not in xs:
        A(f"  global_store_dwordx4 v3, v[16:19], s[18:19] offset:2048 {pubflags}")
    A("  s_mov_b64 exec, -1")
    A(f"  s_mov_b32 s96, {n1}")
    A("  s_mov_b32 s78, 0")
    if "latepre" in xs:
        for k in range(3):
            A(f"  global_load_dwordx4 v[{60+4*k}:{63+4*k}], v{10+k}, s[18:19] {pollflags}")
        for k in range(3):
            A(f"  global_load_dwordx4 v[{48+4*k}:{51+4*k}], v{13+k}, s[18:19] offset:2048 {pollflags}")
    if "mlearly" in xs:
        A("  s_nop 0")
        for k in range(3):
            A(f"  global_load_dwordx4 v[{16+4*k}:{19+4*k}], v{13+k}, s[18:19] offset:2048 {pollflags}")
    stamp(6)
    A("  s_barrier                          ; #2")
    stamp(8)
    if "nocons" in xs:
        A("  s_branch L_cend")
    if "outonly" in xs:
        A("  s_branch L_o_done")
    if "mlearly" in xs:
        A("  s_branch L_o")
    A("L_ml:")
    for k in range(3):
        A(f"  global_load_dwordx4 v[{16+4*k}:{19+4*k}], v{13+k}, s[18:19] offset:2048 {pollflags}")
    A("L_o:")
    for k in range(3):
        A(f"  global_load_dwordx4 v[{28+4*k}:{31+4*k}], v{10+k}, s[18:19] {pollflags}")
    A("  s_cmp_lg_u32 s89, 0")
    A("  s_cbranch_scc1 L_chk")
    A("  s_waitcnt vmcnt(3)")
    def check(base):
        for k in range(3):
            for i in range(4):
                A(f"  v_xor_b32 v{base+4*k+i}, v{base+4*k+i}, v{44+i}")
        A(f"  v_or3_b32 v40, v{base}, v{base+1}, v{base+2}")
        A(f"  v_or3_b32 v41, v{base+3}, v{base+4}, v{base+5}")
        A(f"  v_or3_b32 v42, v{base+6}, v{base+7}, v{base+8}")
        A(f"  v_or3_b32 v40, v{base+9}, v{base+10}, v40")
        A(f"  v_or3_b32 v41, v{base+11}, v41, v42")
        A("  v_or_b32 v40, v40, v41")
        A("  v_and_b32 v40, 0xff, v40")
        A("  v_cmp_ne_u32 vcc, 0, v40")
    check(16)
    A("  s_cbranch_vccnz L_retry_ml")
    A("L_wts:")
    A("  v_cndmask_b32 v20, v20, v5, s[52:53]")
    A("  v_cndmask_b32 v24, v24, v5, s[54:55]")
    A("  v_max3_f32 v40, v16, v20, v24")
    def xred(op):
        A("  s_nop 1")
        A(f"  {op}_dpp v40, v40, v40 row_ror:8 row_mask:0xf bank_mask:0xf")
        A("  v_mov_b32 v41, v40")
        A("  s_nop 1")
        A("  v_permlane16_swap_b32 v40, v41")
        A(f"  {op} v40, v40, v41")
        A("  v_mov_b32 v41, v40")
        A("  s_nop 1")
        A("  v_permlane32_swap_b32 v40, v41")
        A(f"  {op} v40, v40, v41")
    xred("v_max_f32")
    for k in range(3):
        A(f"  v_sub_f32 v{16+4*k}, v{16+4*k}, v40")
    for k in range(3):
        A(f"  v_exp_f32 v{16+4*k}, v{16+4*k}")
    A("  v_mul_f32 v40, v16, v17")
    A("  v_fmac_f32 v40, v20, v21")
    A("  v_fmac_f32 v40, v24, v25")
    xred("v_add_f32")
    A("  v_rcp_f32 v40, v40")
    A("  s_mov_b32 s89, 1")
    for k in range(3):
        A(f"  v_mul_f32 v{16+4*k}, v{16+4*k}, v40")
    stamp(9)
    A("L_chk:")
    A("  s_sub_u32 s96, s96, 1")
    A("  s_waitcnt vmcnt(0)")
    A("  s_cbranch_scc1 L_switch")
    check(28)
    if psleep:
        A("  s_cbranch_vccz L_o_done")
        A(f"  s_sleep {psleep}")
        A("  s_branch L_o")
    else:
        A("  s_cbranch_vccnz L_o")
    A("L_o_done:")
    stamp(10)
    for i in range(4):
        A(f"  v_mul_f32 v{28+i}, v16, v{28+i}")
    for k in (1, 2):
        for i in range(4):
            A(f"  v_fmac_f32 v{28+i}, v{16+4*k}, v{28+4*k+i}")
    A("  s_nop 0")
    A("  v_permlane16_swap_b32 v28, v29")
    A("  v_permlane16_swap_b32 v30, v31")
    A("  v_add_f32 v28, v28, v29")
    A("  v_add_f32 v30, v30, v31")
    A("  s_nop 1")
    A("  v_permlane32_swap_b32 v28, v30")
    A("  v_add_f32 v28, v28, v30")
    A("  s_nop 1")
    A("  v_add_f32_dpp v28, v28, v28 row_ror:8 row_mask:0xf bank_mask:0xf")
    A("  s_mov_b32 exec_lo, 0x00ff00ff")
    A("  s_mov_b32 exec_hi, 0x00ff00ff")
    A("  v_cvt_pk_bf16_f32 v28, v28, v28")
    A(f"  global_store_short v9, v28, s[14:15] {outflags}")
    A("L_cend:")
    if stamps:
        A("  s_waitcnt vmcnt(0)")
        stamp(11)
        A("  s_sub_u32 s96, %d, s96" % n1)
        A(f"  v_writelane_b32 v{VST}, s96, 29")
        stamp_store()
    A("  s_endpgm")
    A("L_retry_ml:")
    A("  s_sub_u32 s96, s96, 1")
    A("  s_waitcnt vmcnt(0)")
    A("  s_cbranch_scc0 L_ml")
    A("L_switch:")
    A("  s_cmp_lg_u32 s78, 0")
    A("  s_cbranch_scc1 L_cend")
    A("  s_mov_b32 s78, 1")
    A(f"  s_mov_b32 s96, {SPIN}")
    for k in range(6):
        A(f"  v_add_u32 v{10+k}, {BOFF}, v{10+k}")
    A("  s_cmp_lg_u32 s89, 0")
    A("  s_cbranch_scc1 L_o")
    A("  s_branch L_ml")

    A("L_cons:")
    stamp(4)
    A(f"  s_mov_b32 s96, {SPIN}")
    A("  global_load_dword v44, v8, s[16:17] sc1" if "nononce" not in xs else "  v_mov_b32 v44, 0x12345679")
    A("  s_and_b32 s93, s2, 7               ; x")
    A("  s_lshl_b32 s85, s93, 1")
    A("  s_bfe_u32 s86, s2, 0x40003         ; slice")
    A("  s_sub_u32 s92, 31, s79")
    A("  s_sub_u32 s90, s79, 1")
    A("  s_lshl_b32 s91, s79, 3")
    A("  s_bitcmp1_b32 s2, 7")
    A("  s_cselect_b32 s92, s92, s90        ; n-1")
    A("  s_cselect_b32 s91, s91, 0")
    A("  s_addc_u32 s85, s85, 0")
    A("  s_add_u32 s91, s91, s93")
    A("  v_lshrrev_b32 v2, 3, v1            ; pp")
    A("  v_and_b32 v9, 7, v1                ; q")
    A("  v_add_u32 v3, 8, v2")
    A("  v_add_u32 v5, 16, v2")
    A("  v_cmp_lt_u32 s[52:53], s92, v3     ; absent k=1")
    A("  v_cmp_lt_u32 s[54:55], s92, v5     ; absent k=2")
    A("  v_min_u32 v3, s92, v3")
    A("  v_min_u32 v5, s92, v5")
    A("  s_bfe_u32 s94, s86, 0x20001        ; h")
    A("  s_lshl_b32 s95, s94, 4")
    A("  s_lshl_b32 s97, s86, 7")
    A("  v_lshl_add_u32 v7, v9, 4, s97")
    for k, r in enumerate([2, 3, 5]):
        A(f"  v_lshl_add_u32 v{r}, v{r}, 3, s91")
        A(f"  v_mul_u32_u24 v{r}, {rec}, v{r}")
        A(f"  v_add_u32 v{10+k}, v{r}, v7           ; O addr")
        A(f"  v_add_u32 v{13+k}, s95, v{r}")
    A("  s_lshr_b32 s95, s94, 1")
    A("  s_lshl_b32 s95, s95, 13")
    A("  s_and_b32 s97, s86, 3")
    A("  s_lshl_b32 s97, s97, 7             ; (h&1)*256 + k*128")
    A("  s_add_u32 s95, s95, s97")
    A("  s_lshl_b32 s97, s85, 9")
    A("  s_add_u32 s95, s95, s97")
    A("  s_and_b32 s97, s86, 8              ; plane*8")
    A("  s_add_u32 s95, s95, s97")
    A("  v_lshrrev_b32 v7, 4, v1            ; rho")
    A("  v_lshlrev_b32 v7, 1, v7")
    A("  v_lshl_add_u32 v9, v9, 4, v7")
    A("  v_add_u32 v9, s95, v9")
    A("  v_mul_u32_u24 v2, 40, v1")
    A("  v_add_u32 v3, s81, v4")
    A(f"  v_mov_b32 v5, {f32(-3e38)}")
    A(f"  s_mov_b32 s87, {f32(C)}")
    A("  s_mov_b32 s88, 0xffffff00")
    A("  s_mov_b32 s89, 0")
    if "prewrite" in xs:
        for k in range(4):
            A(f"  v_mov_b32 v{60+k}, 0")
        A("  global_store_dwordx4 v3, v[60:63], s[18:19]")
        A("  global_store_dwordx4 v3, v[60:63], s[18:19] offset:1024")
        A("  s_mov_b64 exec, 0xff")
        A("  global_store_dwordx4 v3, v[60:63], s[18:19] offset:2048")
        A("  s_mov_b64 exec, -1")
    A("  s_branch L_non")
    A("L_general:")
    A(f"  ds_read_b128 v[{S}:{S+3}], v3 offset:{LDS_DESC+32}")
    A(f"  v_readfirstlane_b32 s74, v{D+3}")
    mkmask(NUG)
    A(f"  s_mul_i32 s90, s84, {NUG}")
    A("  v_add_u32 v8, s90, v1")
    A("  s_waitcnt vmcnt(0) lgkmcnt(0)")
    A(f"  v_add_u32 v8, v8, v{S+2}             ; unit")
    A("  v_lshrrev_b32 v9, 2, v8            ; i")
    A(f"  v_cmp_lt_u32 vcc, v9, v{S}")
    A(f"  v_add_u32 v10, v9, v{S+1}")
    A("  s_nop 0")
    A("  v_cndmask_b32 v10, v10, v9, vcc")
    A("  v_and_b32 v10, 0x1ff, v10")
    A("  v_lshlrev_b32 v10, 2, v10")
    A(f"  ds_read_b32 v10, v10 offset:{LDS_TAB}")
    A(f"  v_cmp_lt_u32 vcc, v8, v{S+3}")
    A("  v_and_b32 v9, 3, v8")
    A("  v_lshl_add_u32 v9, v9, 14, s91")
    A(f"  v_mov_b32 v11, {KVBYTES}")
    A("  s_waitcnt lgkmcnt(0)")
    A("  v_min_u32 v10, 384, v10")
    A("  v_lshl_add_u32 v9, v10, 16, v9")
    A("  v_cndmask_b32 v9, v11, v9, vcc")
    A("  s_nop 0")
    for j in range(NUG):
        A(f"  v_readlane_b32 s{SO+j}, v9, {j}")
    A("  s_and_b32 s75, s74, 1")
    A("  s_bfe_u32 s76, s74, 0x10001")
    A("  s_mul_i32 s75, s75, 0x00ff00ff")
    A("  s_mul_i32 s76, s76, 0xff00ff00")
    A("  s_or_b32 s75, s75, s76")
    for j in range(NUG):
        r = X + 4 * j
        A(f"  buffer_load_dwordx4 v[{r}:{r+3}], v{VK}, s[20:23], s{SO+j} offen{NT}")
    A("  s_mov_b32 exec_lo, s75")
    A("  s_mov_b32 exec_hi, s75")
    for i in range(4):
        A(f"  v_mov_b32 v{Q+i}, 0")
    A("  s_mov_b64 exec, -1")
    A("  s_waitcnt vmcnt(0)")
    tg = lambda j: Y + 4 * (j % 4)
    for g in range(NUG // 4):
        js = list(range(4 * g, 4 * g + 4))
        qk_mfma(js, kreg, tg)
        A("  s_nop 4")
        qk_rest(js, tg)
    arrive()
    for j in range(NUG):
        r = X + 4 * j
        A(f"  buffer_load_dwordx4 v[{r}:{r+3}], v{VV}, s[24:27], s{SO+j} offen{NT}")
    waitmax("g")
    pcalc(NUG)
    pv(NUG, kreg)
    A("  s_branch L_tail")
    A('.section .rodata,"a"')
    A(".p2align 6")
    A(f".amdhsa_kernel {NAME}_kernel")
    A("  .amdhsa_next_free_vgpr 168")
    A("  .amdhsa_next_free_sgpr 102")
    A("  .amdhsa_accum_offset 168")
    A("  .amdhsa_group_segment_fixed_size 0")
    A("  .amdhsa_kernarg_size 64")
    A("  .amdhsa_user_sgpr_count 2")
    A("  .amdhsa_user_sgpr_kernarg_segment_ptr 1")
    A("  .amdhsa_system_sgpr_workgroup_id_x 1")
    A(".end_amdhsa_kernel")
    return "\n".join(L) + "\n"

if __name__ == "__main__":
    import argparse
    ap = argparse.ArgumentParser()
    ap.add_argument("-o", required=True)
    ap.add_argument("--stamps", action="store_true")
    ap.add_argument("--no-nt", action="store_true")
    ap.add_argument("--no-codepf", action="store_true")
    ap.add_argument("--poll", default="sc1")
    ap.add_argument("--pub", default="sc1")
    ap.add_argument("--out", default="")
    ap.add_argument("--cnts", default="14,18,16,16")
    ap.add_argument("--loc", default="")
    ap.add_argument("--n1", type=int, default=64)
    ap.add_argument("--xs", default="")
    ap.add_argument("--rec", type=int, default=2304)
    ap.add_argument("--psleep", type=int, default=0)
    a = ap.parse_args()
    open(a.o, "w").write(gen(a.stamps, not a.no_nt, a.poll, not a.no_codepf, a.pub,
                             tuple(int(x) for x in a.cnts.split(",")), a.out, tuple(a.xs.split(",")), a.rec, a.psleep, a.loc, a.n1))
```

```python
import sys, math, struct

NAME = "standalone__paged_block_table_kv_radixattention__decode"
HDR = open("cdna_kernels/%s.s.ref" % NAME).read().split("; Override launch")[0]

def f32(x):
    return "0x%08x" % struct.unpack("<I", struct.pack("<f", x))[0]

W = 10
NU = 9
NUG = 16
KVBYTES = 25165824
SLOT = 2048
LDS_TAB = W * SLOT
LDS_DESC = LDS_TAB + 2048
LDS_TAG = LDS_DESC + 48
LDS_INIT = LDS_DESC + 64
LDS_MAX = LDS_INIT
LDS_CNT = LDS_INIT + 64
LDS_CNT2 = LDS_INIT + 68
LDS_L = LDS_INIT + 80
LDS_TOTAL = LDS_INIT + 512
SPIN = 1 << 15

def gen(stamps=False, nt=True, pollflags="sc1", codepf=True, pubflags="sc1", cnts=(14, 18, 16, 16),
        outflags="", xs=(), rec=2304, psleep=0, locflags="", n1=64):
    L = []
    A = L.append
    C = (128 ** -0.5) * math.log2(math.e)
    NT = " nt" if nt else ""
    VST = 167
    BOFF = 1 << 20
    assert cnts[0] + cnts[1] == 32 and cnts[2] + cnts[3] == 32 and -(-1212 // min(cnts)) <= W * NU and -(-2048 // min(cnts)) <= W * NUG and max(cnts) <= 24
    magic = [(1 << 24) // c + 1 for c in cnts]
    def stamp(k):
        if not stamps: return
        A("  s_memrealtime s[98:99]")
        A("  s_waitcnt lgkmcnt(0)")
        A(f"  v_writelane_b32 v{VST}, s98, {k}")
    def stamp_store():
        if not stamps: return
        A("  s_getreg_b32 s98, hwreg(HW_REG_XCC_ID)")
        A("  s_getreg_b32 s99, hwreg(HW_REG_HW_ID)")
        A(f"  v_writelane_b32 v{VST}, s98, 30")
        A(f"  v_writelane_b32 v{VST}, s99, 31")
        A("  s_lshl_b32 s98, s2, 4")
        A("  s_add_u32 s98, s98, s84")
        A("  s_lshl_b32 s98, s98, 7")
        A("  s_add_u32 s98, s98, 0x200000")
        A("  s_mov_b64 exec, -1")
        A("  v_lshl_add_u32 v14, v1, 2, s98")
        A("  s_mov_b32 exec_hi, 0")
        A(f"  global_store_dword v14, v{VST}, s[18:19]")
    VK, VV = 4, 5
    VMSK = 6
    D = 8
    Q = 16
    VM, VL, VNEG, VAMAX, VH16, VSLOT, VG, VB = 20, 21, 22, 23, 24, 25, 26, 27
    O = 28
    S = 36
    Y = 52
    X = 88
    SO = 32
    A(HDR.rstrip())
    A(f"; @launch grid=(256,1,1) block=({64*(W+1)},1,1) lds={LDS_TOTAL}")
    A('.amdgcn_target "amdgcn-amd-amdhsa--gfx950"')
    A(".text")
    A(f".globl {NAME}_kernel")
    A(".p2align 12")
    A(".p2align 8")
    A(f".type {NAME}_kernel,@function")
    A(f"{NAME}_kernel:")
    A("  s_load_dwordx16 s[4:19], s[0:1], 0")
    A("  s_getpc_b64 s[82:83]")
    A("  v_lshrrev_b32 v14, 6, v0")
    A("  v_and_b32 v1, 63, v0")
    A("  v_readfirstlane_b32 s84, v14")
    A("  s_cmp_ge_u32 s2, 256")
    A("  s_cbranch_scc1 L_end")
    if stamps:
        A(f"  v_mov_b32 v{VST}, 0")
        A("  s_memrealtime s[98:99]")
    A("  s_and_b32 s85, s2, 7               ; group x")
    A("  s_lshr_b32 s90, s2, 3              ; j")
    A("  s_bitcmp0_b32 s2, 0")
    A(f"  s_cselect_b32 s79, {cnts[0]}, {cnts[2]}         ; nA")
    A(f"  s_mov_b32 s80, {magic[0]}")
    A(f"  s_cselect_b32 s80, s80, {magic[2]}")
    A(f"  s_mov_b32 s91, {magic[1]}")
    A(f"  s_cselect_b32 s91, s91, {magic[3]}")
    A("  s_lshl_b32 s85, s85, 1")
    A("  s_sub_u32 s86, s90, s79")
    A("  s_cmp_ge_u32 s90, s79")
    A("  s_cselect_b32 s86, s86, s90        ; idx")
    A("  s_cselect_b32 s80, s91, s80        ; magic")
    A("  s_addc_u32 s85, s85, 0             ; head")
    A("  s_lshl_b32 s91, s85, 8             ; head*256")
    A(f"  s_mul_i32 s81, s2, {rec}")
    A(f"  s_cmp_eq_u32 s84, {W}")
    A("  s_cbranch_scc1 L_helper")
    A(f"  s_mul_i32 s92, s86, {1212*256}")
    A(f"  s_add_u32 s93, s92, {1212*256}")
    A("  s_mul_hi_u32 s92, s92, s80         ; lo")
    A("  s_mul_hi_u32 s93, s93, s80         ; hi")
    A(f"  s_mul_i32 s94, s84, {NU}")
    A("  s_add_u32 s94, s94, s92")
    A("  v_add_u32 v8, s94, v1              ; unit")
    A("  v_add_u32 v9, 108, v8")
    A("  v_cmp_gt_u32 vcc, 916, v8")
    A(f"  v_lshrrev_b32 v{VG}, 4, v1           ; g")
    A("  v_and_b32 v3, 15, v1               ; n")
    A("  v_cndmask_b32 v9, v9, v8, vcc")
    A("  v_cmp_gt_u32 vcc, s93, v8")
    A("  v_lshl_add_u32 v9, v9, 14, s91")
    A(f"  v_mov_b32 v10, {KVBYTES}")
    A("  v_cndmask_b32 v9, v10, v9, vcc")
    A("  v_and_b32 v14, 3, v1               ; u")
    A("  v_lshrrev_b32 v15, 2, v3           ; t = h")
    for j in range(NU):
        A(f"  v_readlane_b32 s{SO+j}, v9, {j}")
    A(f"  v_lshlrev_b32 v{VK}, 6, v{VG}")
    A(f"  v_lshl_add_u32 v{VK}, v14, 4, v{VK}      ; 64g + 16u")
    A(f"  v_lshrrev_b32 v{VB}, 3, v3           ; bsel")
    A("  v_and_b32 v12, 1, v15              ; hh")
    A(f"  v_lshl_add_u32 v12, v12, 8, v{VK}")
    A(f"  v_lshl_add_u32 v12, v{VB}, 13, v12")
    A("  s_lshl_b32 s90, s85, 9")
    A("  v_add_u32 v12, s90, v12            ; q offset")
    A(f"  v_lshl_add_u32 v{VK}, v15, 12, v{VK}     ; voffK = t*4096 + 64g + 16u")
    A(f"  s_mov_b32 s22, {KVBYTES}")
    A("  s_mov_b32 s23, 0x20000")
    A("  s_waitcnt lgkmcnt(0)")
    if stamps:
        A(f"  v_writelane_b32 v{VST}, s98, 0")
    stamp(1)
    A("  s_mov_b64 s[20:21], s[6:7]")
    A(f"  global_load_dwordx4 v[{Q}:{Q+3}], v12, s[4:5]")
    for j in range(NU):
        r = X + 4 * j
        A(f"  buffer_load_dwordx4 v[{r}:{r+3}], v{VK}, s[20:23], s{SO+j} offen{NT}")
    A("  s_branch L_comp2")

    A("L_helper:")
    A("  s_setprio 3")
    A("  s_memrealtime s[60:61]")
    if "amp" in xs or "ampc" in xs or "ampk" in xs:
        A("  s_memrealtime s[62:63]")
        A("  s_memtime s[64:65]")
    if codepf:
        A("  v_lshlrev_b32 v2, 6, v1")
        A("  global_load_dword v3, v2, s[82:83]")
    A("  v_lshlrev_b32 v4, 4, v1            ; lane*16")
    A("  v_lshlrev_b32 v6, 2, v1            ; lane*4")
    A(f"  v_mov_b32 v7, {f32(-1e28)}")
    A("  v_cmp_gt_u32 vcc, 16, v1")
    A("  v_mov_b32 v8, 0")
    A("  s_mov_b32 s69, 0")
    A("  v_cndmask_b32 v7, 0, v7, vcc")
    A(f"  ds_write_b32 v6, v7 offset:{LDS_INIT}")
    A("  s_waitcnt lgkmcnt(0)")
    if stamps:
        A(f"  v_writelane_b32 v{VST}, s98, 0")
    stamp(1)
    if "ampk" in xs and "p_ka" in xs:
        A("  s_memrealtime s[72:73]")
    A("  global_load_dwordx4 v[12:15], v4, s[10:11]")
    A("  global_load_dwordx4 v[16:19], v4, s[10:11] offset:1024")
    A("  s_load_dwordx2 s[32:33], s[12:13], 0")
    A("  s_cmp_lg_u32 s2, 0")
    A("  s_cbranch_scc1 L_nononce")
    A("  s_lshr_b64 s[60:61], s[60:61], 1")
    A("  s_bitset1_b32 s60, 0")
    A("  s_bfe_u32 s61, s60, 0x10008")
    A("  s_xor_b32 s60, s60, s61")
    A("  v_mov_b32 v9, s60")
    A("  s_mov_b64 exec, 1")
    A("  global_store_dword v8, v9, s[16:17] sc1")
    A("  s_mov_b64 exec, -1")
    A("  s_waitcnt vmcnt(1)")
    A("L_nononce:")
    A("  s_waitcnt lgkmcnt(0)")
    for b in range(2):
        s = 32 + b
        A(f"  s_cmp_lt_i32 s{s}, 1")
        A(f"  s_cselect_b32 s34, {1<<b}, 0")
        A(f"  s_cselect_b32 s{s}, 4096, s{s}")
        A(f"  s_or_b32 s69, s69, s34")
        A(f"  s_min_i32 s{s}, s{s}, 4096")
        A(f"  s_add_u32 s{38+b}, s{s}, 15")
        A(f"  s_lshr_b32 s{38+b}, s{38+b}, 4     ; n{b}")
    A("  s_cmp_eq_u32 s2, 0")
    A("  s_cbranch_scc1 L_btok")
    A("  s_waitcnt vmcnt(0)")
    A("L_btok:")
    if "ampk" in xs and "p_bt" in xs:
        A("  s_memrealtime s[72:73]")
        A("  s_waitcnt lgkmcnt(0)")
    stamp(2)
    A(f"  ds_write_b128 v4, v[12:15] offset:{LDS_TAB}")
    A(f"  ds_write_b128 v4, v[16:19] offset:{LDS_TAB+1024}")
    A("  v_cmp_ne_u64 s[34:35], v[12:13], v[16:17]")
    A("  v_cmp_ne_u64 s[36:37], v[14:15], v[18:19]")
    A("  s_nop 1")
    A("  s_or_b64 s[34:35], s[34:35], s[36:37]")
    A("  s_ff1_i32_b64 s34, s[34:35]")
    A("  s_lshl_b32 s34, s34, 2")
    A("  s_min_u32 s34, s34, s38")
    A("  s_min_u32 s34, s34, s39            ; P")
    A("  s_add_u32 s35, s38, s39")
    A("  s_sub_u32 s35, s35, s34            ; T")
    A("  s_cmp_lg_u32 s35, 303")
    A("  s_cselect_b32 s41, 4, 0")
    A("  s_or_b32 s69, s69, s41")
    A("  s_lshl_b32 s35, s35, 10            ; 4T*256")
    A("  s_mul_i32 s36, s35, s86")
    A("  s_add_u32 s37, s36, s35")
    A("  s_mul_hi_u32 s36, s36, s80         ; lo")
    A("  s_mul_hi_u32 s37, s37, s80         ; hi")
    A("  s_sub_u32 s41, s34, s38")
    A("  s_add_u32 s41, s41, 256            ; P - n0 + 256")
    A("  s_lshr_b32 s40, s36, 2")
    A("  v_add_u32 v12, s40, v1             ; i")
    A("  v_cmp_gt_u32 vcc, s38, v12         ; i < n0")
    A("  v_add_u32 v13, s41, v12")
    A("  v_add_u32 v14, 27, v12")
    A("  v_cndmask_b32 v13, v13, v12, vcc   ; e")
    A("  v_cmp_gt_u32 vcc, 229, v12")
    A("  v_and_b32 v13, 0x1ff, v13")
    A("  v_lshlrev_b32 v13, 2, v13")
    A("  v_cndmask_b32 v14, v14, v12, vcc")
    A("  v_lshlrev_b32 v12, 2, v12")
    A("  s_waitcnt lgkmcnt(0)")
    A(f"  ds_read_b32 v13, v13 offset:{LDS_TAB}")
    A("  v_cmp_gt_u32 s[42:43], s37, v12    ; 4i < hi")
    A("  s_lshl_b32 s44, s36, 2")
    A("  s_sub_u32 s44, 3, s44              ; adj")
    A("  s_lshl_b32 s45, s37, 2             ; 4hi")
    A("  s_min_u32 s46, s32, s45")
    A("  s_add_u32 s46, s46, s44            ; a0'")
    A("  s_lshl_b32 s47, s34, 4             ; 16P")
    A("  s_min_u32 s48, s47, s33")
    A("  s_min_u32 s48, s48, s45")
    A("  s_add_u32 s48, s48, s44            ; a1'")
    A("  s_lshl_b32 s49, s38, 4             ; 16n0")
    A("  s_sub_u32 s50, s49, s47")
    A("  s_add_u32 s50, s50, s33")
    A("  s_min_u32 s50, s50, s45")
    A("  s_add_u32 s50, s50, s44            ; c1'")
    A("  s_add_u32 s49, s49, s44            ; b1'")
    A("  v_mov_b32 v30, 0")
    for lane, sr in [(0, "s46"), (4, "s48"), (5, "s49"), (6, "s50"), (8, "s38"), (9, "s41"), (10, "s36"), (11, "s37")]:
        A(f"  v_writelane_b32 v30, {sr}, {lane}")
    A("  s_waitcnt lgkmcnt(0)")
    A("  v_cmp_ne_u32 vcc, v13, v14")
    A("  s_and_b64 vcc, vcc, s[42:43]")
    A("  s_cselect_b32 s41, 4, 0")
    A("  s_or_b32 s69, s69, s41")
    A("  v_writelane_b32 v30, s69, 3")
    A("  v_writelane_b32 v30, s69, 7")
    A("  s_mov_b64 exec, 0xfff")
    A(f"  ds_write_b32 v6, v30 offset:{LDS_DESC}")
    A("  s_mov_b64 exec, -1")
    A("  s_waitcnt lgkmcnt(0)")
    stamp(3)
    A("  s_barrier                          ; #0")
    A("  s_branch L_cons")

    A("L_comp2:")
    A(f"  v_lshlrev_b32 v{VV}, 12, v{VG}")
    A(f"  v_lshl_add_u32 v{VV}, v3, 4, v{VV}       ; voffV = g*4096 + 16n")
    A("  s_mov_b64 s[24:25], s[8:9]")
    A(f"  s_mov_b32 s26, {KVBYTES}")
    A("  s_mov_b32 s27, 0x20000")
    A(f"  v_lshlrev_b32 v{VB}, 4, v{VB}")
    A("  v_and_b32 v13, 1, v14")
    A("  v_lshlrev_b32 v13, 4, v13")
    A("  v_mov_b32 v2, 0xffff")
    A("  v_lshlrev_b32 v13, v13, v2         ; 0xffff << 16*(u&1)")
    A("  v_cmp_gt_u32 vcc, 2, v14")
    A(f"  v_lshlrev_b32 v{VH16}, 4, v15        ; h*16")
    A(f"  v_lshl_add_u32 v{VAMAX}, v{VG}, 2, v{VH16}   ; h*16+g*4")
    A("  v_cndmask_b32 v12, 0, v13, vcc     ; mask0")
    A("  v_xor_b32 v13, v12, v13            ; mask1")
    A(f"  v_mov_b32 v{VM}, {f32(-1e28)}")
    A(f"  v_mov_b32 v{VNEG}, {f32(-1e30)}")
    A(f"  v_mov_b32 v{VL}, 0")
    for i in range(8):
        A(f"  v_mov_b32 v{O+i}, 0")
    A("  s_lshl_b32 s90, s84, 11")
    A(f"  v_lshl_add_u32 v{VSLOT}, v1, 4, s90")
    A(f"  s_mov_b32 s87, {f32(C)}")
    A("  s_mov_b32 s88, 0xffffff00")
    A("  v_mov_b32 v2, 1")
    A("  v_mov_b32 v3, 0")
    stamp(2)
    A("  s_barrier                          ; #0")
    A(f"  ds_read_b128 v[{D}:{D+3}], v{VB} offset:{LDS_DESC}")
    stamp(3)

    def mkmask(nu):
        A(f"  s_mul_i32 s90, s84, {4*nu}")
        A(f"  v_add_u32 v14, s90, v{VG}            ; B'")
        for k in range(3):
            A(f"  v_sub_u32 v{D+k}, v{D+k}, v14")
        for k in range(3):
            A(f"  v_ashrrev_i32 v{D+k}, 2, v{D+k}")
        for k in range(3):
            A(f"  v_med3_i32 v{D+k}, v{D+k}, 0, 31")
        for k in range(3):
            A(f"  v_bfm_b32 v{D+k}, v{D+k}, 0")
        A(f"  v_bfi_b32 v{VMSK}, v{D+1}, 0, v{D+2}     ; c & ~b")
        A(f"  v_or_b32 v{VMSK}, v{VMSK}, v{D}")
    def qk_mfma(js, kreg, treg):
        for j in js:
            A(f"  v_mfma_f32_16x16x32_bf16 v[{treg(j)}:{treg(j)+3}], v[{kreg(j)}:{kreg(j)+3}], v[{Q}:{Q+3}], 0")
    def qk_rest(js, treg):
        assert len(js) >= 3
        for k in range(4):
            for j in js:
                q = f"quad_perm:[{k},{k},{k},{k}] row_mask:0xf bank_mask:0xf"
                if k == 0:
                    A(f"  v_mov_b32_dpp v{S+j}, v{treg(j)} {q}")
                else:
                    A(f"  v_add_f32_dpp v{S+j}, v{treg(j)+k}, v{S+j} {q}")
        for j in js:
            A(f"  v_bfe_i32 v{treg(j)}, v{VMSK}, {j}, 1")
        for j in js:
            A(f"  v_bfi_b32 v{S+j}, v{treg(j)}, v{S+j}, v{VNEG}")
        js = list(js)
        while js:
            if len(js) >= 2:
                A(f"  v_max3_f32 v{VM}, v{S+js[0]}, v{S+js[1]}, v{VM}"); js = js[2:]
            else:
                A(f"  v_max_f32 v{VM}, v{S+js[0]}, v{VM}"); js = js[1:]
    def arrive():
        A("  s_mov_b32 exec_lo, 0x11111111")
        A("  s_mov_b32 exec_hi, 0x11111111")
        A(f"  ds_max_f32 v{VAMAX}, v{VM} offset:{LDS_MAX}")
        A("  s_mov_b64 exec, 1")
        A(f"  ds_add_u32 v3, v2 offset:{LDS_CNT}")
        A("  s_mov_b64 exec, -1")
    def waitmax(tag):
        A(f"L_wm{tag}:")
        A(f"  ds_read_b32 v{Y+4}, v3 offset:{LDS_CNT}")
        A(f"  ds_read_b128 v[{Y}:{Y+3}], v{VH16} offset:{LDS_MAX}")
        A("  s_waitcnt lgkmcnt(0)")
        A(f"  v_cmp_ne_u32 vcc, {W}, v{Y+4}")
        A(f"  s_cbranch_vccnz L_wm{tag}")
        A(f"  v_max3_f32 v{VM}, v{Y}, v{Y+1}, v{Y+2}")
        A(f"  v_max_f32 v{VM}, v{VM}, v{Y+3}")
        A(f"  v_mul_f32 v{VM}, s87, v{VM}          ; M*c")
        A(f"  v_and_b32 v{VM}, s88, v{VM}")
    def pcalc(nu):
        for j in range(nu):
            A(f"  v_fma_f32 v{S+j}, v{S+j}, s87, -v{VM}")
        for j in range(nu):
            A(f"  v_exp_f32 v{S+j}, v{S+j}")
        for j in range(nu):
            A(f"  v_add_f32 v{VL}, v{VL}, v{S+j}")
            A(f"  v_cvt_pk_bf16_f32 v{S+j}, v{S+j}, v{S+j}")
        A(f"  v_mov_b32 v14, v{VL}")
        A("  v_mul_u32_u24 v15, 40, v15         ; h*40")
        A("  s_lshl_b32 s90, s84, 2")
        A(f"  v_permlane16_swap_b32 v{VL}, v14")
        A(f"  v_add_f32 v{VL}, v{VL}, v14")
        A(f"  v_mov_b32 v14, v{VL}")
        A("  v_add_u32 v15, s90, v15")
        A("  s_nop 0")
        A(f"  v_permlane32_swap_b32 v{VL}, v14")
        A(f"  v_add_f32 v{VL}, v{VL}, v14")
        A("  s_mov_b64 exec, 0x1111")
        A(f"  ds_write_b32 v15, v{VL} offset:{LDS_L}")
        A("  s_mov_b64 exec, 1")
        A(f"  ds_add_u32 v3, v2 offset:{LDS_CNT2}")
        A("  s_mov_b64 exec, -1")
        for j in range(nu):
            A(f"  v_and_b32 v{Y+2*j}, v{S+j}, v12")
            A(f"  v_and_b32 v{Y+2*j+1}, v{S+j}, v13")
        A("  s_lshl_b32 s90, s84, 10")
        A("  v_lshl_add_u32 v14, v1, 4, s90")
        A("  v_add_u32 v15, s81, v14")
        A(f"  v_add_u32 v12, {BOFF}, v15")
    def pv(nu, vreg):
        for j in range(nu):
            A(f"  s_waitcnt vmcnt({nu-1-j})")
            A(f"  v_mfma_f32_16x16x16_bf16 v[{O}:{O+3}], v[{Y+2*j}:{Y+2*j+1}], v[{vreg(j)}:{vreg(j)+1}], v[{O}:{O+3}]")
            A(f"  v_mfma_f32_16x16x16_bf16 v[{O+4}:{O+7}], v[{Y+2*j}:{Y+2*j+1}], v[{vreg(j)+2}:{vreg(j)+3}], v[{O+4}:{O+7}]")

    kreg = lambda j: X + 4 * j
    treg = lambda j: Y + 4 * j
    A("  s_waitcnt vmcnt(6)")
    qk_mfma([0, 1, 2], kreg, treg)
    A("  s_waitcnt lgkmcnt(0)")
    A(f"  v_cmp_ne_u32 vcc, 0, v{D+3}")
    A("  s_cbranch_vccnz L_general")
    mkmask(NU)
    A("  s_waitcnt vmcnt(3)")
    qk_mfma([3, 4, 5], kreg, treg)
    qk_rest([0, 1, 2], treg)
    A("  s_waitcnt vmcnt(0)")
    stamp(4)
    qk_mfma([6, 7, 8], kreg, treg)
    qk_rest([3, 4, 5], treg)
    qk_rest([6, 7, 8], treg)
    arrive()
    stamp(5)
    for j in range(NU):
        r = X + 36 + 4 * j
        A(f"  buffer_load_dwordx4 v[{r}:{r+3}], v{VV}, s[24:27], s{SO+j} offen{NT}")
    stamp(6)
    waitmax("f")
    stamp(7)
    pcalc(NU)
    stamp(8)
    pv(NU, lambda j: X + 36 + 4 * j)
    A("L_tail:")
    stamp(9)
    A("  s_cmp_gt_u32 s84, 1")
    A("  s_nop 5")
    A(f"  ds_write_b128 v{VSLOT}, v[{O}:{O+3}]")
    A(f"  ds_write_b128 v{VSLOT}, v[{O+4}:{O+7}] offset:1024")
    A("  s_waitcnt lgkmcnt(0)")
    A("  s_barrier                          ; #2")
    A("  s_cbranch_scc1 L_fin")
    for w in range(W):
        A(f"  ds_read_b128 v[{X+4*w}:{X+4*w+3}], v14 offset:{w*SLOT}")
    A(f"  ds_read_b128 v[{D}:{D+3}], v3 offset:{LDS_TAG}")
    for w in range(1, W):
        A(f"  s_waitcnt lgkmcnt({W-w})")
        A(f"  v_pk_add_f32 v[{X}:{X+1}], v[{X}:{X+1}], v[{X+4*w}:{X+4*w+1}]")
        A(f"  v_pk_add_f32 v[{X+2}:{X+3}], v[{X+2}:{X+3}], v[{X+4*w+2}:{X+4*w+3}]")
    A("  s_waitcnt lgkmcnt(0)")
    for k in range(4):
        A(f"  v_and_or_b32 v{X+k}, v{X+k}, s88, v{D+k}")
    if "noloc" not in xs:
        A(f"  global_store_dwordx4 v15, v[{X}:{X+3}], s[18:19] {locflags}")
    if "nopub" not in xs:
        A(f"  global_store_dwordx4 v12, v[{X}:{X+3}], s[18:19] {pubflags}")
    A("L_fin:")
    stamp(10)
    stamp_store()
    A("L_end:")
    A("  s_endpgm")

    A("L_non:")
    A("  s_waitcnt vmcnt(0)")
    A("  v_cmp_eq_u32 vcc, 0, v44")
    A("  s_cbranch_vccz L_non_ok")
    A("  s_sleep 8")
    A("  global_load_dword v44, v8, s[16:17] sc1")
    A("  s_sub_u32 s96, s96, 1")
    A("  s_cbranch_scc0 L_non")
    A("  s_waitcnt vmcnt(0)")
    A("L_non_ok:")
    stamp(5)
    if "tlbw" in xs:
        A("  s_mov_b64 exec, 1")
        A("  global_load_dword v72, v3, s[18:19] offset:2048")
        A("  global_load_ushort v73, v9, s[14:15]")
        A("  s_mov_b64 exec, -1")
    if "prepoll" in xs:
        for k in range(3):
            A(f"  global_load_dwordx4 v[{60+4*k}:{63+4*k}], v{10+k}, s[18:19] {pollflags}")
    if "prepollml" in xs:
        for k in range(3):
            A(f"  global_load_dwordx4 v[{48+4*k}:{51+4*k}], v{13+k}, s[18:19] offset:2048 {pollflags}")
    A("  v_bfe_u32 v45, v44, 8, 8")
    A("  v_bfe_u32 v46, v44, 16, 8")
    A("  v_lshrrev_b32 v47, 24, v44")
    A("  v_and_b32 v44, 0xff, v44")
    A("  s_mov_b64 exec, 1")
    A(f"  ds_write_b128 v8, v[44:47] offset:{LDS_TAG}")
    A("  s_mov_b64 exec, 0xff" if "mlfull" in xs else "  s_mov_b64 exec, 0xf")
    A("L_lw:")
    A("  s_sleep 2")
    A(f"  ds_read_b32 v40, v8 offset:{LDS_CNT2}")
    A(f"  ds_read_b128 v[16:19], v4 offset:{LDS_MAX}")
    for k in range(5):
        A(f"  ds_read_b64 v[{20+2*k}:{21+2*k}], v2 offset:{LDS_L+8*k}")
    A("  s_waitcnt lgkmcnt(0)")
    A(f"  v_cmp_ne_u32 vcc, {W}, v40")
    A("  s_cbranch_vccnz L_lw")
    A("  v_max3_f32 v16, v16, v17, v18")
    A("  v_pk_add_f32 v[20:21], v[20:21], v[22:23]")
    A("  v_pk_add_f32 v[24:25], v[24:25], v[26:27]")
    A("  v_max_f32 v16, v16, v19")
    A("  v_pk_add_f32 v[20:21], v[20:21], v[28:29]")
    A("  v_mul_f32 v16, s87, v16")
    A("  v_pk_add_f32 v[20:21], v[20:21], v[24:25]")
    A("  v_and_or_b32 v16, v16, s88, v44")
    A("  v_add_f32 v17, v20, v21")
    A("  v_mov_b32 v18, v46")
    A("  v_mov_b32 v19, v47")
    A("  v_and_or_b32 v17, v17, s88, v45")
    if "noloc" not in xs and "nomlloc" not in xs:
        A(f"  global_store_dwordx4 v3, v[16:19], s[18:19] offset:2048 {locflags}")
    A(f"  v_add_u32 v3, {BOFF}, v3")
    if "nomlpub" not in xs:
        A(f"  global_store_dwordx4 v3, v[16:19], s[18:19] offset:2048 {pubflags}")
    A("  s_mov_b64 exec, -1")
    A(f"  s_mov_b32 s96, {n1}")
    A("  s_mov_b32 s78, 0")
    if "latepre" in xs:
        for k in range(3):
            A(f"  global_load_dwordx4 v[{60+4*k}:{63+4*k}], v{10+k}, s[18:19] {pollflags}")
        for k in range(3):
            A(f"  global_load_dwordx4 v[{48+4*k}:{51+4*k}], v{13+k}, s[18:19] offset:2048 {pollflags}")
    if "mlearly" in xs:
        A("  s_nop 0")
        for k in range(3):
            A(f"  global_load_dwordx4 v[{16+4*k}:{19+4*k}], v{13+k}, s[18:19] offset:2048 {pollflags}")
    stamp(6)
    A("  s_barrier                          ; #2")
    stamp(8)
    if "ampk" in xs and "p_b2" in xs:
        A("  s_memrealtime s[72:73]")
    if "nocons" in xs:
        A("  s_branch L_cend")
    if "outonly" in xs:
        A("  s_branch L_o_done")
    if "mlearly" in xs:
        A("  s_branch L_o")
    A("L_ml:")
    for k in range(3):
        A(f"  global_load_dwordx4 v[{16+4*k}:{19+4*k}], v{13+k}, s[18:19] offset:2048 {pollflags}")
    A("L_o:")
    for k in range(3):
        A(f"  global_load_dwordx4 v[{28+4*k}:{31+4*k}], v{10+k}, s[18:19] {pollflags}")
    A("  s_cmp_lg_u32 s89, 0")
    A("  s_cbranch_scc1 L_chk")
    A("  s_waitcnt vmcnt(3)")
    def check(base):
        for k in range(3):
            for i in range(4):
                A(f"  v_xor_b32 v{base+4*k+i}, v{base+4*k+i}, v{44+i}")
        A(f"  v_or3_b32 v40, v{base}, v{base+1}, v{base+2}")
        A(f"  v_or3_b32 v41, v{base+3}, v{base+4}, v{base+5}")
        A(f"  v_or3_b32 v42, v{base+6}, v{base+7}, v{base+8}")
        A(f"  v_or3_b32 v40, v{base+9}, v{base+10}, v40")
        A(f"  v_or3_b32 v41, v{base+11}, v41, v42")
        A("  v_or_b32 v40, v40, v41")
        A("  v_and_b32 v40, 0xff, v40")
        A("  v_cmp_ne_u32 vcc, 0, v40")
    check(16)
    A("  s_cbranch_vccnz L_retry_ml")
    A("L_wts:")
    A("  v_cndmask_b32 v20, v20, v5, s[52:53]")
    A("  v_cndmask_b32 v24, v24, v5, s[54:55]")
    A("  v_max3_f32 v40, v16, v20, v24")
    def xred(op):
        A("  s_nop 1")
        A(f"  {op}_dpp v40, v40, v40 row_ror:8 row_mask:0xf bank_mask:0xf")
        A("  v_mov_b32 v41, v40")
        A("  s_nop 1")
        A("  v_permlane16_swap_b32 v40, v41")
        A(f"  {op} v40, v40, v41")
        A("  v_mov_b32 v41, v40")
        A("  s_nop 1")
        A("  v_permlane32_swap_b32 v40, v41")
        A(f"  {op} v40, v40, v41")
    xred("v_max_f32")
    for k in range(3):
        A(f"  v_sub_f32 v{16+4*k}, v{16+4*k}, v40")
    for k in range(3):
        A(f"  v_exp_f32 v{16+4*k}, v{16+4*k}")
    A("  v_mul_f32 v40, v16, v17")
    A("  v_fmac_f32 v40, v20, v21")
    A("  v_fmac_f32 v40, v24, v25")
    xred("v_add_f32")
    A("  v_rcp_f32 v40, v40")
    A("  s_mov_b32 s89, 1")
    for k in range(3):
        A(f"  v_mul_f32 v{16+4*k}, v{16+4*k}, v40")
    stamp(9)
    A("L_chk:")
    A("  s_sub_u32 s96, s96, 1")
    A("  s_waitcnt vmcnt(0)")
    A("  s_cbranch_scc1 L_switch")
    check(28)
    if psleep:
        A("  s_cbranch_vccz L_o_done")
        A(f"  s_sleep {psleep}")
        A("  s_branch L_o")
    else:
        A("  s_cbranch_vccnz L_o")
    A("L_o_done:")
    stamp(10)
    for i in range(4):
        A(f"  v_mul_f32 v{28+i}, v16, v{28+i}")
    for k in (1, 2):
        for i in range(4):
            A(f"  v_fmac_f32 v{28+i}, v{16+4*k}, v{28+4*k+i}")
    A("  s_nop 0")
    A("  v_permlane16_swap_b32 v28, v29")
    A("  v_permlane16_swap_b32 v30, v31")
    A("  v_add_f32 v28, v28, v29")
    A("  v_add_f32 v30, v30, v31")
    A("  s_nop 1")
    A("  v_permlane32_swap_b32 v28, v30")
    A("  v_add_f32 v28, v28, v30")
    A("  s_nop 1")
    A("  v_add_f32_dpp v28, v28, v28 row_ror:8 row_mask:0xf bank_mask:0xf")
    A("  s_mov_b32 exec_lo, 0x00ff00ff")
    A("  s_mov_b32 exec_hi, 0x00ff00ff")
    A("  v_cvt_pk_bf16_f32 v28, v28, v28")
    A(f"  global_store_short v9, v28, s[14:15] {outflags}")
    A("L_cend:")
    if "amp" in xs or "ampc" in xs or "ampk" in xs:
        A("  s_waitcnt vmcnt(0)")
        A("  s_memrealtime s[66:67]")
        A("  s_memtime s[70:71]")
        A("  s_waitcnt lgkmcnt(0)")
        if "amp" in xs:
            A("  s_sub_u32 s68, s66, s62")
            A("  s_mul_i32 s68, s68, 9")
        elif "ampk" in xs:
            A("  s_sub_u32 s68, s72, s62")
            A("  s_mul_i32 s68, s68, 9")
        else:
            A("  s_sub_u32 s68, s70, s64")
            A("  s_mul_i32 s68, s68, 3")
            A("  s_lshr_b32 s68, s68, 3")
        A("L_amp:")
        A("  s_sleep 4")
        A("  s_memrealtime s[70:71]")
        A("  s_waitcnt lgkmcnt(0)")
        A("  s_sub_u32 s70, s70, s66")
        A("  s_cmp_lt_u32 s70, s68")
        A("  s_cbranch_scc1 L_amp")
    if stamps:
        A("  s_waitcnt vmcnt(0)")
        stamp(11)
        A("  s_sub_u32 s96, %d, s96" % n1)
        A(f"  v_writelane_b32 v{VST}, s96, 29")
        stamp_store()
    A("  s_endpgm")
    A("L_retry_ml:")
    A("  s_sub_u32 s96, s96, 1")
    A("  s_waitcnt vmcnt(0)")
    A("  s_cbranch_scc0 L_ml")
    A("L_switch:")
    A("  s_cmp_lg_u32 s78, 0")
    A("  s_cbranch_scc1 L_cend")
    A("  s_mov_b32 s78, 1")
    A(f"  s_mov_b32 s96, {SPIN}")
    for k in range(6):
        A(f"  v_add_u32 v{10+k}, {BOFF}, v{10+k}")
    A("  s_cmp_lg_u32 s89, 0")
    A("  s_cbranch_scc1 L_o")
    A("  s_branch L_ml")

    A("L_cons:")
    stamp(4)
    if "ampk" in xs and "p_b0" in xs:
        A("  s_memrealtime s[72:73]")
    A(f"  s_mov_b32 s96, {SPIN}")
    A("  global_load_dword v44, v8, s[16:17] sc1" if "nononce" not in xs else "  v_mov_b32 v44, 0x12345679")
    A("  s_and_b32 s93, s2, 7               ; x")
    A("  s_lshl_b32 s85, s93, 1")
    A("  s_bfe_u32 s86, s2, 0x40003         ; slice")
    A("  s_sub_u32 s92, 31, s79")
    A("  s_sub_u32 s90, s79, 1")
    A("  s_lshl_b32 s91, s79, 3")
    A("  s_bitcmp1_b32 s2, 7")
    A("  s_cselect_b32 s92, s92, s90        ; n-1")
    A("  s_cselect_b32 s91, s91, 0")
    A("  s_addc_u32 s85, s85, 0")
    A("  s_add_u32 s91, s91, s93")
    A("  v_lshrrev_b32 v2, 3, v1            ; pp")
    A("  v_and_b32 v9, 7, v1                ; q")
    A("  v_add_u32 v3, 8, v2")
    A("  v_add_u32 v5, 16, v2")
    A("  v_cmp_lt_u32 s[52:53], s92, v3     ; absent k=1")
    A("  v_cmp_lt_u32 s[54:55], s92, v5     ; absent k=2")
    A("  v_min_u32 v3, s92, v3")
    A("  v_min_u32 v5, s92, v5")
    A("  s_bfe_u32 s94, s86, 0x20001        ; h")
    A("  s_lshl_b32 s95, s94, 4")
    A("  s_lshl_b32 s97, s86, 7")
    A("  v_lshl_add_u32 v7, v9, 4, s97")
    for k, r in enumerate([2, 3, 5]):
        A(f"  v_lshl_add_u32 v{r}, v{r}, 3, s91")
        A(f"  v_mul_u32_u24 v{r}, {rec}, v{r}")
        A(f"  v_add_u32 v{10+k}, v{r}, v7           ; O addr")
        A(f"  v_add_u32 v{13+k}, s95, v{r}")
    A("  s_lshr_b32 s95, s94, 1")
    A("  s_lshl_b32 s95, s95, 13")
    A("  s_and_b32 s97, s86, 3")
    A("  s_lshl_b32 s97, s97, 7             ; (h&1)*256 + k*128")
    A("  s_add_u32 s95, s95, s97")
    A("  s_lshl_b32 s97, s85, 9")
    A("  s_add_u32 s95, s95, s97")
    A("  s_and_b32 s97, s86, 8              ; plane*8")
    A("  s_add_u32 s95, s95, s97")
    A("  v_lshrrev_b32 v7, 4, v1            ; rho")
    A("  v_lshlrev_b32 v7, 1, v7")
    A("  v_lshl_add_u32 v9, v9, 4, v7")
    A("  v_add_u32 v9, s95, v9")
    A("  v_mul_u32_u24 v2, 40, v1")
    A("  v_add_u32 v3, s81, v4")
    A(f"  v_mov_b32 v5, {f32(-3e38)}")
    A(f"  s_mov_b32 s87, {f32(C)}")
    A("  s_mov_b32 s88, 0xffffff00")
    A("  s_mov_b32 s89, 0")
    if "prewrite" in xs:
        for k in range(4):
            A(f"  v_mov_b32 v{60+k}, 0")
        A("  global_store_dwordx4 v3, v[60:63], s[18:19]")
        A("  global_store_dwordx4 v3, v[60:63], s[18:19] offset:1024")
        A("  s_mov_b64 exec, 0xff")
        A("  global_store_dwordx4 v3, v[60:63], s[18:19] offset:2048")
        A("  s_mov_b64 exec, -1")
    A("  s_branch L_non")
    A("L_general:")
    A(f"  ds_read_b128 v[{S}:{S+3}], v3 offset:{LDS_DESC+32}")
    A(f"  v_readfirstlane_b32 s74, v{D+3}")
    mkmask(NUG)
    A(f"  s_mul_i32 s90, s84, {NUG}")
    A("  v_add_u32 v8, s90, v1")
    A("  s_waitcnt vmcnt(0) lgkmcnt(0)")
    A(f"  v_add_u32 v8, v8, v{S+2}             ; unit")
    A("  v_lshrrev_b32 v9, 2, v8            ; i")
    A(f"  v_cmp_lt_u32 vcc, v9, v{S}")
    A(f"  v_add_u32 v10, v9, v{S+1}")
    A("  s_nop 0")
    A("  v_cndmask_b32 v10, v10, v9, vcc")
    A("  v_and_b32 v10, 0x1ff, v10")
    A("  v_lshlrev_b32 v10, 2, v10")
    A(f"  ds_read_b32 v10, v10 offset:{LDS_TAB}")
    A(f"  v_cmp_lt_u32 vcc, v8, v{S+3}")
    A("  v_and_b32 v9, 3, v8")
    A("  v_lshl_add_u32 v9, v9, 14, s91")
    A(f"  v_mov_b32 v11, {KVBYTES}")
    A("  s_waitcnt lgkmcnt(0)")
    A("  v_min_u32 v10, 384, v10")
    A("  v_lshl_add_u32 v9, v10, 16, v9")
    A("  v_cndmask_b32 v9, v11, v9, vcc")
    A("  s_nop 0")
    for j in range(NUG):
        A(f"  v_readlane_b32 s{SO+j}, v9, {j}")
    A("  s_and_b32 s75, s74, 1")
    A("  s_bfe_u32 s76, s74, 0x10001")
    A("  s_mul_i32 s75, s75, 0x00ff00ff")
    A("  s_mul_i32 s76, s76, 0xff00ff00")
    A("  s_or_b32 s75, s75, s76")
    for j in range(NUG):
        r = X + 4 * j
        A(f"  buffer_load_dwordx4 v[{r}:{r+3}], v{VK}, s[20:23], s{SO+j} offen{NT}")
    A("  s_mov_b32 exec_lo, s75")
    A("  s_mov_b32 exec_hi, s75")
    for i in range(4):
        A(f"  v_mov_b32 v{Q+i}, 0")
    A("  s_mov_b64 exec, -1")
    A("  s_waitcnt vmcnt(0)")
    tg = lambda j: Y + 4 * (j % 4)
    for g in range(NUG // 4):
        js = list(range(4 * g, 4 * g + 4))
        qk_mfma(js, kreg, tg)
        A("  s_nop 4")
        qk_rest(js, tg)
    arrive()
    for j in range(NUG):
        r = X + 4 * j
        A(f"  buffer_load_dwordx4 v[{r}:{r+3}], v{VV}, s[24:27], s{SO+j} offen{NT}")
    waitmax("g")
    pcalc(NUG)
    pv(NUG, kreg)
    A("  s_branch L_tail")
    A('.section .rodata,"a"')
    A(".p2align 6")
    A(f".amdhsa_kernel {NAME}_kernel")
    A("  .amdhsa_next_free_vgpr 168")
    A("  .amdhsa_next_free_sgpr 102")
    A("  .amdhsa_accum_offset 168")
    A("  .amdhsa_group_segment_fixed_size 0")
    A("  .amdhsa_kernarg_size 64")
    A("  .amdhsa_user_sgpr_count 2")
    A("  .amdhsa_user_sgpr_kernarg_segment_ptr 1")
    A("  .amdhsa_system_sgpr_workgroup_id_x 1")
    A(".end_amdhsa_kernel")
    return "\n".join(L) + "\n"

if __name__ == "__main__":
    import argparse
    ap = argparse.ArgumentParser()
    ap.add_argument("-o", required=True)
    ap.add_argument("--stamps", action="store_true")
    ap.add_argument("--no-nt", action="store_true")
    ap.add_argument("--no-codepf", action="store_true")
    ap.add_argument("--poll", default="sc1")
    ap.add_argument("--pub", default="sc1")
    ap.add_argument("--out", default="")
    ap.add_argument("--cnts", default="14,18,16,16")
    ap.add_argument("--loc", default="")
    ap.add_argument("--n1", type=int, default=64)
    ap.add_argument("--xs", default="")
    ap.add_argument("--rec", type=int, default=2304)
    ap.add_argument("--psleep", type=int, default=0)
    a = ap.parse_args()
    open(a.o, "w").write(gen(a.stamps, not a.no_nt, a.poll, not a.no_codepf, a.pub,
                             tuple(int(x) for x in a.cnts.split(",")), a.out, tuple(a.xs.split(",")), a.rec, a.psleep, a.loc, a.n1))
```

```python
import sys, math, struct

NAME = "standalone__paged_block_table_kv_radixattention__decode"
HDR = open("cdna_kernels/%s.s.ref" % NAME).read().split("; Override launch")[0]

def f32(x):
    return "0x%08x" % struct.unpack("<I", struct.pack("<f", x))[0]

W = 10
NU = 9
NUG = 16
KVBYTES = 25165824
SLOT = 2048
LDS_TAB = W * SLOT
LDS_DESC = LDS_TAB + 2048
LDS_TAG = LDS_DESC + 48
LDS_INIT = LDS_DESC + 64
LDS_MAX = LDS_INIT
LDS_CNT = LDS_INIT + 64
LDS_CNT2 = LDS_INIT + 68
LDS_L = LDS_INIT + 80
LDS_TOTAL = LDS_INIT + 512
SPIN = 1 << 15

def gen(stamps=False, nt=True, pollflags="sc1", codepf=True, pubflags="sc1", cnts=(14, 18, 16, 16),
        outflags="", xs=(), rec=2304, psleep=0, locflags="", n1=64):
    L = []
    A = L.append
    C = (128 ** -0.5) * math.log2(math.e)
    NT = " nt" if nt else ""
    VST = 167
    BOFF = 1 << 20
    assert cnts[0] + cnts[1] == 32 and cnts[2] + cnts[3] == 32 and -(-1212 // min(cnts)) <= W * NU and -(-2048 // min(cnts)) <= W * NUG and max(cnts) <= 24
    magic = [(1 << 24) // c + 1 for c in cnts]
    def stamp(k):
        if not stamps: return
        A("  s_memrealtime s[98:99]")
        A("  s_waitcnt lgkmcnt(0)")
        A(f"  v_writelane_b32 v{VST}, s98, {k}")
    def stamp_store():
        if not stamps: return
        A("  s_getreg_b32 s98, hwreg(HW_REG_XCC_ID)")
        A("  s_getreg_b32 s99, hwreg(HW_REG_HW_ID)")
        A(f"  v_writelane_b32 v{VST}, s98, 30")
        A(f"  v_writelane_b32 v{VST}, s99, 31")
        A("  s_lshl_b32 s98, s2, 4")
        A("  s_add_u32 s98, s98, s84")
        A("  s_lshl_b32 s98, s98, 7")
        A("  s_add_u32 s98, s98, 0x200000")
        A("  s_mov_b64 exec, -1")
        A("  v_lshl_add_u32 v14, v1, 2, s98")
        A("  s_mov_b32 exec_hi, 0")
        A(f"  global_store_dword v14, v{VST}, s[18:19]")
    VK, VV = 4, 5
    VMSK = 6
    D = 8
    Q = 16
    VM, VL, VNEG, VAMAX, VH16, VSLOT, VG, VB = 20, 21, 22, 23, 24, 25, 26, 27
    O = 28
    S = 36
    Y = 52
    X = 88
    SO = 32
    A(HDR.rstrip())
    A(f"; @launch grid=(256,1,1) block=({64*(W+1)},1,1) lds={LDS_TOTAL}")
    A('.amdgcn_target "amdgcn-amd-amdhsa--gfx950"')
    A(".text")
    A(f".globl {NAME}_kernel")
    A(".p2align 12")
    A(".p2align 8")
    A(f".type {NAME}_kernel,@function")
    A(f"{NAME}_kernel:")
    if "ampw" in xs:
        A("  s_memrealtime s[62:63]")
    A("  s_load_dwordx16 s[4:19], s[0:1], 0")
    A("  s_getpc_b64 s[82:83]")
    A("  v_lshrrev_b32 v14, 6, v0")
    A("  v_and_b32 v1, 63, v0")
    A("  v_readfirstlane_b32 s84, v14")
    A("  s_cmp_ge_u32 s2, 256")
    A("  s_cbranch_scc1 L_end")
    if stamps:
        A(f"  v_mov_b32 v{VST}, 0")
        A("  s_memrealtime s[98:99]")
    A("  s_and_b32 s85, s2, 7               ; group x")
    A("  s_lshr_b32 s90, s2, 3              ; j")
    A("  s_bitcmp0_b32 s2, 0")
    A(f"  s_cselect_b32 s79, {cnts[0]}, {cnts[2]}         ; nA")
    A(f"  s_mov_b32 s80, {magic[0]}")
    A(f"  s_cselect_b32 s80, s80, {magic[2]}")
    A(f"  s_mov_b32 s91, {magic[1]}")
    A(f"  s_cselect_b32 s91, s91, {magic[3]}")
    A("  s_lshl_b32 s85, s85, 1")
    A("  s_sub_u32 s86, s90, s79")
    A("  s_cmp_ge_u32 s90, s79")
    A("  s_cselect_b32 s86, s86, s90        ; idx")
    A("  s_cselect_b32 s80, s91, s80        ; magic")
    A("  s_addc_u32 s85, s85, 0             ; head")
    A("  s_lshl_b32 s91, s85, 8             ; head*256")
    A(f"  s_mul_i32 s81, s2, {rec}")
    A(f"  s_cmp_eq_u32 s84, {W}")
    A("  s_cbranch_scc1 L_helper")
    A(f"  s_mul_i32 s92, s86, {1212*256}")
    A(f"  s_add_u32 s93, s92, {1212*256}")
    A("  s_mul_hi_u32 s92, s92, s80         ; lo")
    A("  s_mul_hi_u32 s93, s93, s80         ; hi")
    A(f"  s_mul_i32 s94, s84, {NU}")
    A("  s_add_u32 s94, s94, s92")
    A("  v_add_u32 v8, s94, v1              ; unit")
    A("  v_add_u32 v9, 108, v8")
    A("  v_cmp_gt_u32 vcc, 916, v8")
    A(f"  v_lshrrev_b32 v{VG}, 4, v1           ; g")
    A("  v_and_b32 v3, 15, v1               ; n")
    A("  v_cndmask_b32 v9, v9, v8, vcc")
    A("  v_cmp_gt_u32 vcc, s93, v8")
    A("  v_lshl_add_u32 v9, v9, 14, s91")
    A(f"  v_mov_b32 v10, {KVBYTES}")
    A("  v_cndmask_b32 v9, v10, v9, vcc")
    A("  v_and_b32 v14, 3, v1               ; u")
    A("  v_lshrrev_b32 v15, 2, v3           ; t = h")
    for j in range(NU):
        A(f"  v_readlane_b32 s{SO+j}, v9, {j}")
    A(f"  v_lshlrev_b32 v{VK}, 6, v{VG}")
    A(f"  v_lshl_add_u32 v{VK}, v14, 4, v{VK}      ; 64g + 16u")
    A(f"  v_lshrrev_b32 v{VB}, 3, v3           ; bsel")
    A("  v_and_b32 v12, 1, v15              ; hh")
    A(f"  v_lshl_add_u32 v12, v12, 8, v{VK}")
    A(f"  v_lshl_add_u32 v12, v{VB}, 13, v12")
    A("  s_lshl_b32 s90, s85, 9")
    A("  v_add_u32 v12, s90, v12            ; q offset")
    A(f"  v_lshl_add_u32 v{VK}, v15, 12, v{VK}     ; voffK = t*4096 + 64g + 16u")
    A(f"  s_mov_b32 s22, {KVBYTES}")
    A("  s_mov_b32 s23, 0x20000")
    if "ampw" in xs and "w_pre" in xs:
        A("  s_memrealtime s[72:73]")
    A("  s_waitcnt lgkmcnt(0)")
    if "ampw" in xs and "w_ka" in xs:
        A("  s_memrealtime s[72:73]")
    if stamps:
        A(f"  v_writelane_b32 v{VST}, s98, 0")
    stamp(1)
    A("  s_mov_b64 s[20:21], s[6:7]")
    A(f"  global_load_dwordx4 v[{Q}:{Q+3}], v12, s[4:5]")
    for j in range(NU):
        r = X + 4 * j
        A(f"  buffer_load_dwordx4 v[{r}:{r+3}], v{VK}, s[20:23], s{SO+j} offen{NT}")
    A("  s_branch L_comp2")

    A("L_helper:")
    A("  s_setprio 3")
    A("  s_memrealtime s[60:61]")
    if "amp" in xs or "ampc" in xs or "ampk" in xs:
        A("  s_memrealtime s[62:63]")
        A("  s_memtime s[64:65]")
    if codepf:
        A("  v_lshlrev_b32 v2, 6, v1")
        A("  global_load_dword v3, v2, s[82:83]")
    A("  v_lshlrev_b32 v4, 4, v1            ; lane*16")
    A("  v_lshlrev_b32 v6, 2, v1            ; lane*4")
    A(f"  v_mov_b32 v7, {f32(-1e28)}")
    A("  v_cmp_gt_u32 vcc, 16, v1")
    A("  v_mov_b32 v8, 0")
    A("  s_mov_b32 s69, 0")
    A("  v_cndmask_b32 v7, 0, v7, vcc")
    A(f"  ds_write_b32 v6, v7 offset:{LDS_INIT}")
    A("  s_waitcnt lgkmcnt(0)")
    if stamps:
        A(f"  v_writelane_b32 v{VST}, s98, 0")
    stamp(1)
    if "ampk" in xs and "p_ka" in xs:
        A("  s_memrealtime s[72:73]")
    A("  global_load_dwordx4 v[12:15], v4, s[10:11]")
    A("  global_load_dwordx4 v[16:19], v4, s[10:11] offset:1024")
    A("  s_load_dwordx2 s[32:33], s[12:13], 0")
    A("  s_cmp_lg_u32 s2, 0")
    A("  s_cbranch_scc1 L_nononce")
    A("  s_lshr_b64 s[60:61], s[60:61], 1")
    A("  s_bitset1_b32 s60, 0")
    A("  s_bfe_u32 s61, s60, 0x10008")
    A("  s_xor_b32 s60, s60, s61")
    A("  v_mov_b32 v9, s60")
    A("  s_mov_b64 exec, 1")
    A("  global_store_dword v8, v9, s[16:17] sc1")
    A("  s_mov_b64 exec, -1")
    A("  s_waitcnt vmcnt(1)")
    A("L_nononce:")
    A("  s_waitcnt lgkmcnt(0)")
    for b in range(2):
        s = 32 + b
        A(f"  s_cmp_lt_i32 s{s}, 1")
        A(f"  s_cselect_b32 s34, {1<<b}, 0")
        A(f"  s_cselect_b32 s{s}, 4096, s{s}")
        A(f"  s_or_b32 s69, s69, s34")
        A(f"  s_min_i32 s{s}, s{s}, 4096")
        A(f"  s_add_u32 s{38+b}, s{s}, 15")
        A(f"  s_lshr_b32 s{38+b}, s{38+b}, 4     ; n{b}")
    A("  s_cmp_eq_u32 s2, 0")
    A("  s_cbranch_scc1 L_btok")
    A("  s_waitcnt vmcnt(0)")
    A("L_btok:")
    if "ampk" in xs and "p_bt" in xs:
        A("  s_memrealtime s[72:73]")
        A("  s_waitcnt lgkmcnt(0)")
    stamp(2)
    A(f"  ds_write_b128 v4, v[12:15] offset:{LDS_TAB}")
    A(f"  ds_write_b128 v4, v[16:19] offset:{LDS_TAB+1024}")
    A("  v_cmp_ne_u64 s[34:35], v[12:13], v[16:17]")
    A("  v_cmp_ne_u64 s[36:37], v[14:15], v[18:19]")
    A("  s_nop 1")
    A("  s_or_b64 s[34:35], s[34:35], s[36:37]")
    A("  s_ff1_i32_b64 s34, s[34:35]")
    A("  s_lshl_b32 s34, s34, 2")
    A("  s_min_u32 s34, s34, s38")
    A("  s_min_u32 s34, s34, s39            ; P")
    A("  s_add_u32 s35, s38, s39")
    A("  s_sub_u32 s35, s35, s34            ; T")
    A("  s_cmp_lg_u32 s35, 303")
    A("  s_cselect_b32 s41, 4, 0")
    A("  s_or_b32 s69, s69, s41")
    A("  s_lshl_b32 s35, s35, 10            ; 4T*256")
    A("  s_mul_i32 s36, s35, s86")
    A("  s_add_u32 s37, s36, s35")
    A("  s_mul_hi_u32 s36, s36, s80         ; lo")
    A("  s_mul_hi_u32 s37, s37, s80         ; hi")
    A("  s_sub_u32 s41, s34, s38")
    A("  s_add_u32 s41, s41, 256            ; P - n0 + 256")
    A("  s_lshr_b32 s40, s36, 2")
    A("  v_add_u32 v12, s40, v1             ; i")
    A("  v_cmp_gt_u32 vcc, s38, v12         ; i < n0")
    A("  v_add_u32 v13, s41, v12")
    A("  v_add_u32 v14, 27, v12")
    A("  v_cndmask_b32 v13, v13, v12, vcc   ; e")
    A("  v_cmp_gt_u32 vcc, 229, v12")
    A("  v_and_b32 v13, 0x1ff, v13")
    A("  v_lshlrev_b32 v13, 2, v13")
    A("  v_cndmask_b32 v14, v14, v12, vcc")
    A("  v_lshlrev_b32 v12, 2, v12")
    A("  s_waitcnt lgkmcnt(0)")
    A(f"  ds_read_b32 v13, v13 offset:{LDS_TAB}")
    A("  v_cmp_gt_u32 s[42:43], s37, v12    ; 4i < hi")
    A("  s_lshl_b32 s44, s36, 2")
    A("  s_sub_u32 s44, 3, s44              ; adj")
    A("  s_lshl_b32 s45, s37, 2             ; 4hi")
    A("  s_min_u32 s46, s32, s45")
    A("  s_add_u32 s46, s46, s44            ; a0'")
    A("  s_lshl_b32 s47, s34, 4             ; 16P")
    A("  s_min_u32 s48, s47, s33")
    A("  s_min_u32 s48, s48, s45")
    A("  s_add_u32 s48, s48, s44            ; a1'")
    A("  s_lshl_b32 s49, s38, 4             ; 16n0")
    A("  s_sub_u32 s50, s49, s47")
    A("  s_add_u32 s50, s50, s33")
    A("  s_min_u32 s50, s50, s45")
    A("  s_add_u32 s50, s50, s44            ; c1'")
    A("  s_add_u32 s49, s49, s44            ; b1'")
    A("  v_mov_b32 v30, 0")
    for lane, sr in [(0, "s46"), (4, "s48"), (5, "s49"), (6, "s50"), (8, "s38"), (9, "s41"), (10, "s36"), (11, "s37")]:
        A(f"  v_writelane_b32 v30, {sr}, {lane}")
    A("  s_waitcnt lgkmcnt(0)")
    A("  v_cmp_ne_u32 vcc, v13, v14")
    A("  s_and_b64 vcc, vcc, s[42:43]")
    A("  s_cselect_b32 s41, 4, 0")
    A("  s_or_b32 s69, s69, s41")
    A("  v_writelane_b32 v30, s69, 3")
    A("  v_writelane_b32 v30, s69, 7")
    A("  s_mov_b64 exec, 0xfff")
    A(f"  ds_write_b32 v6, v30 offset:{LDS_DESC}")
    A("  s_mov_b64 exec, -1")
    A("  s_waitcnt lgkmcnt(0)")
    stamp(3)
    A("  s_barrier                          ; #0")
    A("  s_branch L_cons")

    A("L_comp2:")
    A(f"  v_lshlrev_b32 v{VV}, 12, v{VG}")
    A(f"  v_lshl_add_u32 v{VV}, v3, 4, v{VV}       ; voffV = g*4096 + 16n")
    A("  s_mov_b64 s[24:25], s[8:9]")
    A(f"  s_mov_b32 s26, {KVBYTES}")
    A("  s_mov_b32 s27, 0x20000")
    A(f"  v_lshlrev_b32 v{VB}, 4, v{VB}")
    A("  v_and_b32 v13, 1, v14")
    A("  v_lshlrev_b32 v13, 4, v13")
    A("  v_mov_b32 v2, 0xffff")
    A("  v_lshlrev_b32 v13, v13, v2         ; 0xffff << 16*(u&1)")
    A("  v_cmp_gt_u32 vcc, 2, v14")
    A(f"  v_lshlrev_b32 v{VH16}, 4, v15        ; h*16")
    A(f"  v_lshl_add_u32 v{VAMAX}, v{VG}, 2, v{VH16}   ; h*16+g*4")
    A("  v_cndmask_b32 v12, 0, v13, vcc     ; mask0")
    A("  v_xor_b32 v13, v12, v13            ; mask1")
    A(f"  v_mov_b32 v{VM}, {f32(-1e28)}")
    A(f"  v_mov_b32 v{VNEG}, {f32(-1e30)}")
    A(f"  v_mov_b32 v{VL}, 0")
    for i in range(8):
        A(f"  v_mov_b32 v{O+i}, 0")
    A("  s_lshl_b32 s90, s84, 11")
    A(f"  v_lshl_add_u32 v{VSLOT}, v1, 4, s90")
    A(f"  s_mov_b32 s87, {f32(C)}")
    A("  s_mov_b32 s88, 0xffffff00")
    A("  v_mov_b32 v2, 1")
    A("  v_mov_b32 v3, 0")
    stamp(2)
    A("  s_barrier                          ; #0")
    A(f"  ds_read_b128 v[{D}:{D+3}], v{VB} offset:{LDS_DESC}")
    stamp(3)

    def mkmask(nu):
        A(f"  s_mul_i32 s90, s84, {4*nu}")
        A(f"  v_add_u32 v14, s90, v{VG}            ; B'")
        for k in range(3):
            A(f"  v_sub_u32 v{D+k}, v{D+k}, v14")
        for k in range(3):
            A(f"  v_ashrrev_i32 v{D+k}, 2, v{D+k}")
        for k in range(3):
            A(f"  v_med3_i32 v{D+k}, v{D+k}, 0, 31")
        for k in range(3):
            A(f"  v_bfm_b32 v{D+k}, v{D+k}, 0")
        A(f"  v_bfi_b32 v{VMSK}, v{D+1}, 0, v{D+2}     ; c & ~b")
        A(f"  v_or_b32 v{VMSK}, v{VMSK}, v{D}")
    def qk_mfma(js, kreg, treg):
        for j in js:
            A(f"  v_mfma_f32_16x16x32_bf16 v[{treg(j)}:{treg(j)+3}], v[{kreg(j)}:{kreg(j)+3}], v[{Q}:{Q+3}], 0")
    def qk_rest(js, treg):
        assert len(js) >= 3
        for k in range(4):
            for j in js:
                q = f"quad_perm:[{k},{k},{k},{k}] row_mask:0xf bank_mask:0xf"
                if k == 0:
                    A(f"  v_mov_b32_dpp v{S+j}, v{treg(j)} {q}")
                else:
                    A(f"  v_add_f32_dpp v{S+j}, v{treg(j)+k}, v{S+j} {q}")
        for j in js:
            A(f"  v_bfe_i32 v{treg(j)}, v{VMSK}, {j}, 1")
        for j in js:
            A(f"  v_bfi_b32 v{S+j}, v{treg(j)}, v{S+j}, v{VNEG}")
        js = list(js)
        while js:
            if len(js) >= 2:
                A(f"  v_max3_f32 v{VM}, v{S+js[0]}, v{S+js[1]}, v{VM}"); js = js[2:]
            else:
                A(f"  v_max_f32 v{VM}, v{S+js[0]}, v{VM}"); js = js[1:]
    def arrive():
        A("  s_mov_b32 exec_lo, 0x11111111")
        A("  s_mov_b32 exec_hi, 0x11111111")
        A(f"  ds_max_f32 v{VAMAX}, v{VM} offset:{LDS_MAX}")
        A("  s_mov_b64 exec, 1")
        A(f"  ds_add_u32 v3, v2 offset:{LDS_CNT}")
        A("  s_mov_b64 exec, -1")
    def waitmax(tag):
        A(f"L_wm{tag}:")
        A(f"  ds_read_b32 v{Y+4}, v3 offset:{LDS_CNT}")
        A(f"  ds_read_b128 v[{Y}:{Y+3}], v{VH16} offset:{LDS_MAX}")
        A("  s_waitcnt lgkmcnt(0)")
        A(f"  v_cmp_ne_u32 vcc, {W}, v{Y+4}")
        A(f"  s_cbranch_vccnz L_wm{tag}")
        A(f"  v_max3_f32 v{VM}, v{Y}, v{Y+1}, v{Y+2}")
        A(f"  v_max_f32 v{VM}, v{VM}, v{Y+3}")
        A(f"  v_mul_f32 v{VM}, s87, v{VM}          ; M*c")
        A(f"  v_and_b32 v{VM}, s88, v{VM}")
    def pcalc(nu):
        for j in range(nu):
            A(f"  v_fma_f32 v{S+j}, v{S+j}, s87, -v{VM}")
        for j in range(nu):
            A(f"  v_exp_f32 v{S+j}, v{S+j}")
        for j in range(nu):
            A(f"  v_add_f32 v{VL}, v{VL}, v{S+j}")
            A(f"  v_cvt_pk_bf16_f32 v{S+j}, v{S+j}, v{S+j}")
        A(f"  v_mov_b32 v14, v{VL}")
        A("  v_mul_u32_u24 v15, 40, v15         ; h*40")
        A("  s_lshl_b32 s90, s84, 2")
        A(f"  v_permlane16_swap_b32 v{VL}, v14")
        A(f"  v_add_f32 v{VL}, v{VL}, v14")
        A(f"  v_mov_b32 v14, v{VL}")
        A("  v_add_u32 v15, s90, v15")
        A("  s_nop 0")
        A(f"  v_permlane32_swap_b32 v{VL}, v14")
        A(f"  v_add_f32 v{VL}, v{VL}, v14")
        A("  s_mov_b64 exec, 0x1111")
        A(f"  ds_write_b32 v15, v{VL} offset:{LDS_L}")
        A("  s_mov_b64 exec, 1")
        A(f"  ds_add_u32 v3, v2 offset:{LDS_CNT2}")
        A("  s_mov_b64 exec, -1")
        for j in range(nu):
            A(f"  v_and_b32 v{Y+2*j}, v{S+j}, v12")
            A(f"  v_and_b32 v{Y+2*j+1}, v{S+j}, v13")
        A("  s_lshl_b32 s90, s84, 10")
        A("  v_lshl_add_u32 v14, v1, 4, s90")
        A("  v_add_u32 v15, s81, v14")
        A(f"  v_add_u32 v12, {BOFF}, v15")
    def pv(nu, vreg):
        for j in range(nu):
            A(f"  s_waitcnt vmcnt({nu-1-j})")
            A(f"  v_mfma_f32_16x16x16_bf16 v[{O}:{O+3}], v[{Y+2*j}:{Y+2*j+1}], v[{vreg(j)}:{vreg(j)+1}], v[{O}:{O+3}]")
            A(f"  v_mfma_f32_16x16x16_bf16 v[{O+4}:{O+7}], v[{Y+2*j}:{Y+2*j+1}], v[{vreg(j)+2}:{vreg(j)+3}], v[{O+4}:{O+7}]")

    kreg = lambda j: X + 4 * j
    treg = lambda j: Y + 4 * j
    A("  s_waitcnt vmcnt(6)")
    qk_mfma([0, 1, 2], kreg, treg)
    A("  s_waitcnt lgkmcnt(0)")
    A(f"  v_cmp_ne_u32 vcc, 0, v{D+3}")
    A("  s_cbranch_vccnz L_general")
    mkmask(NU)
    A("  s_waitcnt vmcnt(3)")
    qk_mfma([3, 4, 5], kreg, treg)
    qk_rest([0, 1, 2], treg)
    A("  s_waitcnt vmcnt(0)")
    stamp(4)
    qk_mfma([6, 7, 8], kreg, treg)
    qk_rest([3, 4, 5], treg)
    qk_rest([6, 7, 8], treg)
    arrive()
    stamp(5)
    for j in range(NU):
        r = X + 36 + 4 * j
        A(f"  buffer_load_dwordx4 v[{r}:{r+3}], v{VV}, s[24:27], s{SO+j} offen{NT}")
    stamp(6)
    waitmax("f")
    stamp(7)
    pcalc(NU)
    stamp(8)
    pv(NU, lambda j: X + 36 + 4 * j)
    A("L_tail:")
    stamp(9)
    A("  s_cmp_gt_u32 s84, 1")
    A("  s_nop 5")
    A(f"  ds_write_b128 v{VSLOT}, v[{O}:{O+3}]")
    A(f"  ds_write_b128 v{VSLOT}, v[{O+4}:{O+7}] offset:1024")
    A("  s_waitcnt lgkmcnt(0)")
    A("  s_barrier                          ; #2")
    A("  s_cbranch_scc1 L_fin")
    for w in range(W):
        A(f"  ds_read_b128 v[{X+4*w}:{X+4*w+3}], v14 offset:{w*SLOT}")
    A(f"  ds_read_b128 v[{D}:{D+3}], v3 offset:{LDS_TAG}")
    for w in range(1, W):
        A(f"  s_waitcnt lgkmcnt({W-w})")
        A(f"  v_pk_add_f32 v[{X}:{X+1}], v[{X}:{X+1}], v[{X+4*w}:{X+4*w+1}]")
        A(f"  v_pk_add_f32 v[{X+2}:{X+3}], v[{X+2}:{X+3}], v[{X+4*w+2}:{X+4*w+3}]")
    A("  s_waitcnt lgkmcnt(0)")
    for k in range(4):
        A(f"  v_and_or_b32 v{X+k}, v{X+k}, s88, v{D+k}")
    if "noloc" not in xs:
        A(f"  global_store_dwordx4 v15, v[{X}:{X+3}], s[18:19] {locflags}")
    if "nopub" not in xs:
        A(f"  global_store_dwordx4 v12, v[{X}:{X+3}], s[18:19] {pubflags}")
    A("L_fin:")
    if "ampw" in xs:
        A("  s_memrealtime s[66:67]")
        A("  s_waitcnt lgkmcnt(0)")
        A("  s_sub_u32 s68, s72, s62")
        A("  s_mul_i32 s68, s68, 50")
        A("L_ampw:")
        A("  s_sleep 4")
        A("  s_memrealtime s[70:71]")
        A("  s_waitcnt lgkmcnt(0)")
        A("  s_sub_u32 s70, s70, s66")
        A("  s_cmp_lt_u32 s70, s68")
        A("  s_cbranch_scc1 L_ampw")
    stamp(10)
    stamp_store()
    A("L_end:")
    A("  s_endpgm")

    A("L_non:")
    A("  s_waitcnt vmcnt(0)")
    A("  v_cmp_eq_u32 vcc, 0, v44")
    A("  s_cbranch_vccz L_non_ok")
    A("  s_sleep 8")
    A("  global_load_dword v44, v8, s[16:17] sc1")
    A("  s_sub_u32 s96, s96, 1")
    A("  s_cbranch_scc0 L_non")
    A("  s_waitcnt vmcnt(0)")
    A("L_non_ok:")
    stamp(5)
    if "tlbw" in xs:
        A("  s_mov_b64 exec, 1")
        A("  global_load_dword v72, v3, s[18:19] offset:2048")
        A("  global_load_ushort v73, v9, s[14:15]")
        A("  s_mov_b64 exec, -1")
    if "prepoll" in xs:
        for k in range(3):
            A(f"  global_load_dwordx4 v[{60+4*k}:{63+4*k}], v{10+k}, s[18:19] {pollflags}")
    if "prepollml" in xs:
        for k in range(3):
            A(f"  global_load_dwordx4 v[{48+4*k}:{51+4*k}], v{13+k}, s[18:19] offset:2048 {pollflags}")
    A("  v_bfe_u32 v45, v44, 8, 8")
    A("  v_bfe_u32 v46, v44, 16, 8")
    A("  v_lshrrev_b32 v47, 24, v44")
    A("  v_and_b32 v44, 0xff, v44")
    A("  s_mov_b64 exec, 1")
    A(f"  ds_write_b128 v8, v[44:47] offset:{LDS_TAG}")
    A("  s_mov_b64 exec, 0xff" if "mlfull" in xs else "  s_mov_b64 exec, 0xf")
    A("L_lw:")
    A("  s_sleep 2")
    A(f"  ds_read_b32 v40, v8 offset:{LDS_CNT2}")
    A(f"  ds_read_b128 v[16:19], v4 offset:{LDS_MAX}")
    for k in range(5):
        A(f"  ds_read_b64 v[{20+2*k}:{21+2*k}], v2 offset:{LDS_L+8*k}")
    A("  s_waitcnt lgkmcnt(0)")
    A(f"  v_cmp_ne_u32 vcc, {W}, v40")
    A("  s_cbranch_vccnz L_lw")
    A("  v_max3_f32 v16, v16, v17, v18")
    A("  v_pk_add_f32 v[20:21], v[20:21], v[22:23]")
    A("  v_pk_add_f32 v[24:25], v[24:25], v[26:27]")
    A("  v_max_f32 v16, v16, v19")
    A("  v_pk_add_f32 v[20:21], v[20:21], v[28:29]")
    A("  v_mul_f32 v16, s87, v16")
    A("  v_pk_add_f32 v[20:21], v[20:21], v[24:25]")
    A("  v_and_or_b32 v16, v16, s88, v44")
    A("  v_add_f32 v17, v20, v21")
    A("  v_mov_b32 v18, v46")
    A("  v_mov_b32 v19, v47")
    A("  v_and_or_b32 v17, v17, s88, v45")
    if "noloc" not in xs and "nomlloc" not in xs:
        A(f"  global_store_dwordx4 v3, v[16:19], s[18:19] offset:2048 {locflags}")
    A(f"  v_add_u32 v3, {BOFF}, v3")
    if "nomlpub" not in xs:
        A(f"  global_store_dwordx4 v3, v[16:19], s[18:19] offset:2048 {pubflags}")
    A("  s_mov_b64 exec, -1")
    A(f"  s_mov_b32 s96, {n1}")
    A("  s_mov_b32 s78, 0")
    if "latepre" in xs:
        for k in range(3):
            A(f"  global_load_dwordx4 v[{60+4*k}:{63+4*k}], v{10+k}, s[18:19] {pollflags}")
        for k in range(3):
            A(f"  global_load_dwordx4 v[{48+4*k}:{51+4*k}], v{13+k}, s[18:19] offset:2048 {pollflags}")
    if "mlearly" in xs:
        A("  s_nop 0")
        for k in range(3):
            A(f"  global_load_dwordx4 v[{16+4*k}:{19+4*k}], v{13+k}, s[18:19] offset:2048 {pollflags}")
    stamp(6)
    A("  s_barrier                          ; #2")
    stamp(8)
    if "ampk" in xs and "p_b2" in xs:
        A("  s_memrealtime s[72:73]")
    if "nocons" in xs:
        A("  s_branch L_cend")
    if "outonly" in xs:
        A("  s_branch L_o_done")
    if "mlearly" in xs:
        A("  s_branch L_o")
    A("L_ml:")
    for k in range(3):
        A(f"  global_load_dwordx4 v[{16+4*k}:{19+4*k}], v{13+k}, s[18:19] offset:2048 {pollflags}")
    A("L_o:")
    for k in range(3):
        A(f"  global_load_dwordx4 v[{28+4*k}:{31+4*k}], v{10+k}, s[18:19] {pollflags}")
    A("  s_cmp_lg_u32 s89, 0")
    A("  s_cbranch_scc1 L_chk")
    A("  s_waitcnt vmcnt(3)")
    def check(base):
        for k in range(3):
            for i in range(4):
                A(f"  v_xor_b32 v{base+4*k+i}, v{base+4*k+i}, v{44+i}")
        A(f"  v_or3_b32 v40, v{base}, v{base+1}, v{base+2}")
        A(f"  v_or3_b32 v41, v{base+3}, v{base+4}, v{base+5}")
        A(f"  v_or3_b32 v42, v{base+6}, v{base+7}, v{base+8}")
        A(f"  v_or3_b32 v40, v{base+9}, v{base+10}, v40")
        A(f"  v_or3_b32 v41, v{base+11}, v41, v42")
        A("  v_or_b32 v40, v40, v41")
        A("  v_and_b32 v40, 0xff, v40")
        A("  v_cmp_ne_u32 vcc, 0, v40")
    check(16)
    A("  s_cbranch_vccnz L_retry_ml")
    A("L_wts:")
    A("  v_cndmask_b32 v20, v20, v5, s[52:53]")
    A("  v_cndmask_b32 v24, v24, v5, s[54:55]")
    A("  v_max3_f32 v40, v16, v20, v24")
    def xred(op):
        A("  s_nop 1")
        A(f"  {op}_dpp v40, v40, v40 row_ror:8 row_mask:0xf bank_mask:0xf")
        A("  v_mov_b32 v41, v40")
        A("  s_nop 1")
        A("  v_permlane16_swap_b32 v40, v41")
        A(f"  {op} v40, v40, v41")
        A("  v_mov_b32 v41, v40")
        A("  s_nop 1")
        A("  v_permlane32_swap_b32 v40, v41")
        A(f"  {op} v40, v40, v41")
    xred("v_max_f32")
    for k in range(3):
        A(f"  v_sub_f32 v{16+4*k}, v{16+4*k}, v40")
    for k in range(3):
        A(f"  v_exp_f32 v{16+4*k}, v{16+4*k}")
    A("  v_mul_f32 v40, v16, v17")
    A("  v_fmac_f32 v40, v20, v21")
    A("  v_fmac_f32 v40, v24, v25")
    xred("v_add_f32")
    A("  v_rcp_f32 v40, v40")
    A("  s_mov_b32 s89, 1")
    for k in range(3):
        A(f"  v_mul_f32 v{16+4*k}, v{16+4*k}, v40")
    stamp(9)
    A("L_chk:")
    A("  s_sub_u32 s96, s96, 1")
    A("  s_waitcnt vmcnt(0)")
    A("  s_cbranch_scc1 L_switch")
    check(28)
    if psleep:
        A("  s_cbranch_vccz L_o_done")
        A(f"  s_sleep {psleep}")
        A("  s_branch L_o")
    else:
        A("  s_cbranch_vccnz L_o")
    A("L_o_done:")
    stamp(10)
    for i in range(4):
        A(f"  v_mul_f32 v{28+i}, v16, v{28+i}")
    for k in (1, 2):
        for i in range(4):
            A(f"  v_fmac_f32 v{28+i}, v{16+4*k}, v{28+4*k+i}")
    A("  s_nop 0")
    A("  v_permlane16_swap_b32 v28, v29")
    A("  v_permlane16_swap_b32 v30, v31")
    A("  v_add_f32 v28, v28, v29")
    A("  v_add_f32 v30, v30, v31")
    A("  s_nop 1")
    A("  v_permlane32_swap_b32 v28, v30")
    A("  v_add_f32 v28, v28, v30")
    A("  s_nop 1")
    A("  v_add_f32_dpp v28, v28, v28 row_ror:8 row_mask:0xf bank_mask:0xf")
    A("  s_mov_b32 exec_lo, 0x00ff00ff")
    A("  s_mov_b32 exec_hi, 0x00ff00ff")
    A("  v_cvt_pk_bf16_f32 v28, v28, v28")
    A(f"  global_store_short v9, v28, s[14:15] {outflags}")
    A("L_cend:")
    if "amp" in xs or "ampc" in xs or "ampk" in xs:
        A("  s_waitcnt vmcnt(0)")
        A("  s_memrealtime s[66:67]")
        A("  s_memtime s[70:71]")
        A("  s_waitcnt lgkmcnt(0)")
        if "amp" in xs:
            A("  s_sub_u32 s68, s66, s62")
            A("  s_mul_i32 s68, s68, 9")
        elif "ampk" in xs:
            A("  s_sub_u32 s68, s72, s62")
            A("  s_mul_i32 s68, s68, 9")
        else:
            A("  s_sub_u32 s68, s70, s64")
            A("  s_mul_i32 s68, s68, 3")
            A("  s_lshr_b32 s68, s68, 3")
        A("L_amp:")
        A("  s_sleep 4")
        A("  s_memrealtime s[70:71]")
        A("  s_waitcnt lgkmcnt(0)")
        A("  s_sub_u32 s70, s70, s66")
        A("  s_cmp_lt_u32 s70, s68")
        A("  s_cbranch_scc1 L_amp")
    if stamps:
        A("  s_waitcnt vmcnt(0)")
        stamp(11)
        A("  s_sub_u32 s96, %d, s96" % n1)
        A(f"  v_writelane_b32 v{VST}, s96, 29")
        stamp_store()
    A("  s_endpgm")
    A("L_retry_ml:")
    A("  s_sub_u32 s96, s96, 1")
    A("  s_waitcnt vmcnt(0)")
    A("  s_cbranch_scc0 L_ml")
    A("L_switch:")
    A("  s_cmp_lg_u32 s78, 0")
    A("  s_cbranch_scc1 L_cend")
    A("  s_mov_b32 s78, 1")
    A(f"  s_mov_b32 s96, {SPIN}")
    for k in range(6):
        A(f"  v_add_u32 v{10+k}, {BOFF}, v{10+k}")
    A("  s_cmp_lg_u32 s89, 0")
    A("  s_cbranch_scc1 L_o")
    A("  s_branch L_ml")

    A("L_cons:")
    stamp(4)
    if "ampk" in xs and "p_b0" in xs:
        A("  s_memrealtime s[72:73]")
    A(f"  s_mov_b32 s96, {SPIN}")
    A("  global_load_dword v44, v8, s[16:17] sc1" if "nononce" not in xs else "  v_mov_b32 v44, 0x12345679")
    A("  s_and_b32 s93, s2, 7               ; x")
    A("  s_lshl_b32 s85, s93, 1")
    A("  s_bfe_u32 s86, s2, 0x40003         ; slice")
    A("  s_sub_u32 s92, 31, s79")
    A("  s_sub_u32 s90, s79, 1")
    A("  s_lshl_b32 s91, s79, 3")
    A("  s_bitcmp1_b32 s2, 7")
    A("  s_cselect_b32 s92, s92, s90        ; n-1")
    A("  s_cselect_b32 s91, s91, 0")
    A("  s_addc_u32 s85, s85, 0")
    A("  s_add_u32 s91, s91, s93")
    A("  v_lshrrev_b32 v2, 3, v1            ; pp")
    A("  v_and_b32 v9, 7, v1                ; q")
    A("  v_add_u32 v3, 8, v2")
    A("  v_add_u32 v5, 16, v2")
    A("  v_cmp_lt_u32 s[52:53], s92, v3     ; absent k=1")
    A("  v_cmp_lt_u32 s[54:55], s92, v5     ; absent k=2")
    A("  v_min_u32 v3, s92, v3")
    A("  v_min_u32 v5, s92, v5")
    A("  s_bfe_u32 s94, s86, 0x20001        ; h")
    A("  s_lshl_b32 s95, s94, 4")
    A("  s_lshl_b32 s97, s86, 7")
    A("  v_lshl_add_u32 v7, v9, 4, s97")
    for k, r in enumerate([2, 3, 5]):
        A(f"  v_lshl_add_u32 v{r}, v{r}, 3, s91")
        A(f"  v_mul_u32_u24 v{r}, {rec}, v{r}")
        A(f"  v_add_u32 v{10+k}, v{r}, v7           ; O addr")
        A(f"  v_add_u32 v{13+k}, s95, v{r}")
    A("  s_lshr_b32 s95, s94, 1")
    A("  s_lshl_b32 s95, s95, 13")
    A("  s_and_b32 s97, s86, 3")
    A("  s_lshl_b32 s97, s97, 7             ; (h&1)*256 + k*128")
    A("  s_add_u32 s95, s95, s97")
    A("  s_lshl_b32 s97, s85, 9")
    A("  s_add_u32 s95, s95, s97")
    A("  s_and_b32 s97, s86, 8              ; plane*8")
    A("  s_add_u32 s95, s95, s97")
    A("  v_lshrrev_b32 v7, 4, v1            ; rho")
    A("  v_lshlrev_b32 v7, 1, v7")
    A("  v_lshl_add_u32 v9, v9, 4, v7")
    A("  v_add_u32 v9, s95, v9")
    A("  v_mul_u32_u24 v2, 40, v1")
    A("  v_add_u32 v3, s81, v4")
    A(f"  v_mov_b32 v5, {f32(-3e38)}")
    A(f"  s_mov_b32 s87, {f32(C)}")
    A("  s_mov_b32 s88, 0xffffff00")
    A("  s_mov_b32 s89, 0")
    if "prewrite" in xs:
        for k in range(4):
            A(f"  v_mov_b32 v{60+k}, 0")
        A("  global_store_dwordx4 v3, v[60:63], s[18:19]")
        A("  global_store_dwordx4 v3, v[60:63], s[18:19] offset:1024")
        A("  s_mov_b64 exec, 0xff")
        A("  global_store_dwordx4 v3, v[60:63], s[18:19] offset:2048")
        A("  s_mov_b64 exec, -1")
    A("  s_branch L_non")
    A("L_general:")
    A(f"  ds_read_b128 v[{S}:{S+3}], v3 offset:{LDS_DESC+32}")
    A(f"  v_readfirstlane_b32 s74, v{D+3}")
    mkmask(NUG)
    A(f"  s_mul_i32 s90, s84, {NUG}")
    A("  v_add_u32 v8, s90, v1")
    A("  s_waitcnt vmcnt(0) lgkmcnt(0)")
    A(f"  v_add_u32 v8, v8, v{S+2}             ; unit")
    A("  v_lshrrev_b32 v9, 2, v8            ; i")
    A(f"  v_cmp_lt_u32 vcc, v9, v{S}")
    A(f"  v_add_u32 v10, v9, v{S+1}")
    A("  s_nop 0")
    A("  v_cndmask_b32 v10, v10, v9, vcc")
    A("  v_and_b32 v10, 0x1ff, v10")
    A("  v_lshlrev_b32 v10, 2, v10")
    A(f"  ds_read_b32 v10, v10 offset:{LDS_TAB}")
    A(f"  v_cmp_lt_u32 vcc, v8, v{S+3}")
    A("  v_and_b32 v9, 3, v8")
    A("  v_lshl_add_u32 v9, v9, 14, s91")
    A(f"  v_mov_b32 v11, {KVBYTES}")
    A("  s_waitcnt lgkmcnt(0)")
    A("  v_min_u32 v10, 384, v10")
    A("  v_lshl_add_u32 v9, v10, 16, v9")
    A("  v_cndmask_b32 v9, v11, v9, vcc")
    A("  s_nop 0")
    for j in range(NUG):
        A(f"  v_readlane_b32 s{SO+j}, v9, {j}")
    A("  s_and_b32 s75, s74, 1")
    A("  s_bfe_u32 s76, s74, 0x10001")
    A("  s_mul_i32 s75, s75, 0x00ff00ff")
    A("  s_mul_i32 s76, s76, 0xff00ff00")
    A("  s_or_b32 s75, s75, s76")
    for j in range(NUG):
        r = X + 4 * j
        A(f"  buffer_load_dwordx4 v[{r}:{r+3}], v{VK}, s[20:23], s{SO+j} offen{NT}")
    A("  s_mov_b32 exec_lo, s75")
    A("  s_mov_b32 exec_hi, s75")
    for i in range(4):
        A(f"  v_mov_b32 v{Q+i}, 0")
    A("  s_mov_b64 exec, -1")
    A("  s_waitcnt vmcnt(0)")
    tg = lambda j: Y + 4 * (j % 4)
    for g in range(NUG // 4):
        js = list(range(4 * g, 4 * g + 4))
        qk_mfma(js, kreg, tg)
        A("  s_nop 4")
        qk_rest(js, tg)
    arrive()
    for j in range(NUG):
        r = X + 4 * j
        A(f"  buffer_load_dwordx4 v[{r}:{r+3}], v{VV}, s[24:27], s{SO+j} offen{NT}")
    waitmax("g")
    pcalc(NUG)
    pv(NUG, kreg)
    A("  s_branch L_tail")
    A('.section .rodata,"a"')
    A(".p2align 6")
    A(f".amdhsa_kernel {NAME}_kernel")
    A("  .amdhsa_next_free_vgpr 168")
    A("  .amdhsa_next_free_sgpr 102")
    A("  .amdhsa_accum_offset 168")
    A("  .amdhsa_group_segment_fixed_size 0")
    A("  .amdhsa_kernarg_size 64")
    A("  .amdhsa_user_sgpr_count 2")
    A("  .amdhsa_user_sgpr_kernarg_segment_ptr 1")
    A("  .amdhsa_system_sgpr_workgroup_id_x 1")
    A(".end_amdhsa_kernel")
    return "\n".join(L) + "\n"

if __name__ == "__main__":
    import argparse
    ap = argparse.ArgumentParser()
    ap.add_argument("-o", required=True)
    ap.add_argument("--stamps", action="store_true")
    ap.add_argument("--no-nt", action="store_true")
    ap.add_argument("--no-codepf", action="store_true")
    ap.add_argument("--poll", default="sc1")
    ap.add_argument("--pub", default="sc1")
    ap.add_argument("--out", default="")
    ap.add_argument("--cnts", default="14,18,16,16")
    ap.add_argument("--loc", default="")
    ap.add_argument("--n1", type=int, default=64)
    ap.add_argument("--xs", default="")
    ap.add_argument("--rec", type=int, default=2304)
    ap.add_argument("--psleep", type=int, default=0)
    a = ap.parse_args()
    open(a.o, "w").write(gen(a.stamps, not a.no_nt, a.poll, not a.no_codepf, a.pub,
                             tuple(int(x) for x in a.cnts.split(",")), a.out, tuple(a.xs.split(",")), a.rec, a.psleep, a.loc, a.n1))
```

```python
import sys, math, struct

NAME = "standalone__paged_block_table_kv_radixattention__decode"
HDR = open("cdna_kernels/%s.s.ref" % NAME).read().split("; Override launch")[0]

def f32(x):
    return "0x%08x" % struct.unpack("<I", struct.pack("<f", x))[0]

W = 10
NU = 9
NUG = 16
KVBYTES = 25165824
SLOT = 2048
LDS_TAB = W * SLOT
LDS_DESC = LDS_TAB + 2048
LDS_TAG = LDS_DESC + 48
LDS_INIT = LDS_DESC + 64
LDS_MAX = LDS_INIT
LDS_CNT = LDS_INIT + 64
LDS_CNT2 = LDS_INIT + 68
LDS_L = LDS_INIT + 80
LDS_TOTAL = LDS_INIT + 512
SPIN = 1 << 15

def gen(stamps=False, nt=True, pollflags="sc1", codepf=True, pubflags="sc1", cnts=(14, 18, 16, 16),
        outflags="", xs=(), rec=2304, psleep=0, locflags="", n1=64):
    L = []
    A = L.append
    C = (128 ** -0.5) * math.log2(math.e)
    NT = " nt" if nt else ""
    VST = 167
    BOFF = 1 << 20
    assert cnts[0] + cnts[1] == 32 and cnts[2] + cnts[3] == 32 and -(-1212 // min(cnts)) <= W * NU and -(-2048 // min(cnts)) <= W * NUG and max(cnts) <= 24
    magic = [(1 << 24) // c + 1 for c in cnts]
    def stamp(k):
        if not stamps: return
        A("  s_memrealtime s[98:99]")
        A("  s_waitcnt lgkmcnt(0)")
        A(f"  v_writelane_b32 v{VST}, s98, {k}")
    def stamp_store():
        if not stamps: return
        A("  s_getreg_b32 s98, hwreg(HW_REG_XCC_ID)")
        A("  s_getreg_b32 s99, hwreg(HW_REG_HW_ID)")
        A(f"  v_writelane_b32 v{VST}, s98, 30")
        A(f"  v_writelane_b32 v{VST}, s99, 31")
        A("  s_lshl_b32 s98, s2, 4")
        A("  s_add_u32 s98, s98, s84")
        A("  s_lshl_b32 s98, s98, 7")
        A("  s_add_u32 s98, s98, 0x200000")
        A("  s_mov_b64 exec, -1")
        A("  v_lshl_add_u32 v14, v1, 2, s98")
        A("  s_mov_b32 exec_hi, 0")
        A(f"  global_store_dword v14, v{VST}, s[18:19]")
    VK, VV = 4, 5
    VMSK = 6
    D = 8
    Q = 16
    VM, VL, VNEG, VAMAX, VH16, VSLOT, VG, VB = 20, 21, 22, 23, 24, 25, 26, 27
    O = 28
    S = 36
    Y = 52
    X = 88
    SO = 32
    A(HDR.rstrip())
    A(f"; @launch grid=(256,1,1) block=({64*(W+1)},1,1) lds={LDS_TOTAL}")
    A('.amdgcn_target "amdgcn-amd-amdhsa--gfx950"')
    A(".text")
    A(f".globl {NAME}_kernel")
    A(".p2align 12")
    A(".p2align 8")
    A(f".type {NAME}_kernel,@function")
    A(f"{NAME}_kernel:")
    if "ampw" in xs:
        A("  s_memrealtime s[62:63]")
    A("  s_load_dwordx16 s[4:19], s[0:1], 0")
    A("  s_getpc_b64 s[82:83]")
    if "pf0" in xs:
        A("  v_lshlrev_b32 v2, 7, v0")
        A("  v_cmpx_gt_u32 vcc, 40, v0")
        A("  global_load_dword v166, v2, s[82:83]")
        A("  s_mov_b64 exec, -1")
    A("  v_lshrrev_b32 v14, 6, v0")
    A("  v_and_b32 v1, 63, v0")
    A("  v_readfirstlane_b32 s84, v14")
    A("  s_cmp_ge_u32 s2, 256")
    A("  s_cbranch_scc1 L_end")
    if stamps:
        A(f"  v_mov_b32 v{VST}, 0")
        A("  s_memrealtime s[98:99]")
    A("  s_and_b32 s85, s2, 7               ; group x")
    A("  s_lshr_b32 s90, s2, 3              ; j")
    A("  s_bitcmp0_b32 s2, 0")
    A(f"  s_cselect_b32 s79, {cnts[0]}, {cnts[2]}         ; nA")
    A(f"  s_mov_b32 s80, {magic[0]}")
    A(f"  s_cselect_b32 s80, s80, {magic[2]}")
    A(f"  s_mov_b32 s91, {magic[1]}")
    A(f"  s_cselect_b32 s91, s91, {magic[3]}")
    A("  s_lshl_b32 s85, s85, 1")
    A("  s_sub_u32 s86, s90, s79")
    A("  s_cmp_ge_u32 s90, s79")
    A("  s_cselect_b32 s86, s86, s90        ; idx")
    A("  s_cselect_b32 s80, s91, s80        ; magic")
    A("  s_addc_u32 s85, s85, 0             ; head")
    A("  s_lshl_b32 s91, s85, 8             ; head*256")
    A(f"  s_mul_i32 s81, s2, {rec}")
    A(f"  s_cmp_eq_u32 s84, {W}")
    A("  s_cbranch_scc1 L_helper")
    A(f"  s_mul_i32 s92, s86, {1212*256}")
    A(f"  s_add_u32 s93, s92, {1212*256}")
    A("  s_mul_hi_u32 s92, s92, s80         ; lo")
    A("  s_mul_hi_u32 s93, s93, s80         ; hi")
    A(f"  s_mul_i32 s94, s84, {NU}")
    A("  s_add_u32 s94, s94, s92")
    A("  v_add_u32 v8, s94, v1              ; unit")
    A("  v_add_u32 v9, 108, v8")
    A("  v_cmp_gt_u32 vcc, 916, v8")
    A(f"  v_lshrrev_b32 v{VG}, 4, v1           ; g")
    A("  v_and_b32 v3, 15, v1               ; n")
    A("  v_cndmask_b32 v9, v9, v8, vcc")
    A("  v_cmp_gt_u32 vcc, s93, v8")
    A("  v_lshl_add_u32 v9, v9, 14, s91")
    A(f"  v_mov_b32 v10, {KVBYTES}")
    A("  v_cndmask_b32 v9, v10, v9, vcc")
    A("  v_and_b32 v14, 3, v1               ; u")
    A("  v_lshrrev_b32 v15, 2, v3           ; t = h")
    for j in range(NU):
        A(f"  v_readlane_b32 s{SO+j}, v9, {j}")
    A(f"  v_lshlrev_b32 v{VK}, 6, v{VG}")
    A(f"  v_lshl_add_u32 v{VK}, v14, 4, v{VK}      ; 64g + 16u")
    A(f"  v_lshrrev_b32 v{VB}, 3, v3           ; bsel")
    A("  v_and_b32 v12, 1, v15              ; hh")
    A(f"  v_lshl_add_u32 v12, v12, 8, v{VK}")
    A(f"  v_lshl_add_u32 v12, v{VB}, 13, v12")
    A("  s_lshl_b32 s90, s85, 9")
    A("  v_add_u32 v12, s90, v12            ; q offset")
    A(f"  v_lshl_add_u32 v{VK}, v15, 12, v{VK}     ; voffK = t*4096 + 64g + 16u")
    A(f"  s_mov_b32 s22, {KVBYTES}")
    A("  s_mov_b32 s23, 0x20000")
    if "ampw" in xs and "w_pre" in xs:
        A("  s_memrealtime s[72:73]")
    A("  s_waitcnt lgkmcnt(0)")
    if "ampw" in xs and "w_ka" in xs:
        A("  s_memrealtime s[72:73]")
    if stamps:
        A(f"  v_writelane_b32 v{VST}, s98, 0")
    stamp(1)
    A("  s_mov_b64 s[20:21], s[6:7]")
    A(f"  global_load_dwordx4 v[{Q}:{Q+3}], v12, s[4:5]")
    for j in range(NU):
        r = X + 4 * j
        A(f"  buffer_load_dwordx4 v[{r}:{r+3}], v{VK}, s[20:23], s{SO+j} offen{NT}")
    A("  s_branch L_comp2")

    A("L_helper:")
    A("  s_setprio 3")
    A("  s_memrealtime s[60:61]")
    if "amp" in xs or "ampc" in xs or "ampk" in xs:
        A("  s_memrealtime s[62:63]")
        A("  s_memtime s[64:65]")
    if codepf and "pf128" in xs:
        A("  v_lshlrev_b32 v2, 7, v1")
        A("  s_mov_b32 exec_hi, 0xff")
        A("  global_load_dword v3, v2, s[82:83]")
        A("  s_mov_b64 exec, -1")
    elif codepf:
        A("  v_lshlrev_b32 v2, 6, v1")
        A("  global_load_dword v3, v2, s[82:83]")
    A("  v_lshlrev_b32 v4, 4, v1            ; lane*16")
    A("  v_lshlrev_b32 v6, 2, v1            ; lane*4")
    A(f"  v_mov_b32 v7, {f32(-1e28)}")
    A("  v_cmp_gt_u32 vcc, 16, v1")
    A("  v_mov_b32 v8, 0")
    A("  s_mov_b32 s69, 0")
    A("  v_cndmask_b32 v7, 0, v7, vcc")
    A(f"  ds_write_b32 v6, v7 offset:{LDS_INIT}")
    A("  s_waitcnt lgkmcnt(0)")
    if stamps:
        A(f"  v_writelane_b32 v{VST}, s98, 0")
    stamp(1)
    if "ampk" in xs and "p_ka" in xs:
        A("  s_memrealtime s[72:73]")
    A("  global_load_dwordx4 v[12:15], v4, s[10:11]")
    A("  global_load_dwordx4 v[16:19], v4, s[10:11] offset:1024")
    A("  s_load_dwordx2 s[32:33], s[12:13], 0")
    A("  s_cmp_lg_u32 s2, 0")
    A("  s_cbranch_scc1 L_nononce")
    A("  s_lshr_b64 s[60:61], s[60:61], 1")
    A("  s_bitset1_b32 s60, 0")
    A("  s_bfe_u32 s61, s60, 0x10008")
    A("  s_xor_b32 s60, s60, s61")
    A("  v_mov_b32 v9, s60")
    A("  s_mov_b64 exec, 1")
    A("  global_store_dword v8, v9, s[16:17] sc1")
    A("  s_mov_b64 exec, -1")
    A("  s_waitcnt vmcnt(1)")
    A("L_nononce:")
    A("  s_waitcnt lgkmcnt(0)")
    for b in range(2):
        s = 32 + b
        A(f"  s_cmp_lt_i32 s{s}, 1")
        A(f"  s_cselect_b32 s34, {1<<b}, 0")
        A(f"  s_cselect_b32 s{s}, 4096, s{s}")
        A(f"  s_or_b32 s69, s69, s34")
        A(f"  s_min_i32 s{s}, s{s}, 4096")
        A(f"  s_add_u32 s{38+b}, s{s}, 15")
        A(f"  s_lshr_b32 s{38+b}, s{38+b}, 4     ; n{b}")
    A("  s_cmp_eq_u32 s2, 0")
    A("  s_cbranch_scc1 L_btok")
    A("  s_waitcnt vmcnt(0)")
    A("L_btok:")
    if "ampk" in xs and "p_bt" in xs:
        A("  s_memrealtime s[72:73]")
        A("  s_waitcnt lgkmcnt(0)")
    stamp(2)
    A(f"  ds_write_b128 v4, v[12:15] offset:{LDS_TAB}")
    A(f"  ds_write_b128 v4, v[16:19] offset:{LDS_TAB+1024}")
    A("  v_cmp_ne_u64 s[34:35], v[12:13], v[16:17]")
    A("  v_cmp_ne_u64 s[36:37], v[14:15], v[18:19]")
    A("  s_nop 1")
    A("  s_or_b64 s[34:35], s[34:35], s[36:37]")
    A("  s_ff1_i32_b64 s34, s[34:35]")
    A("  s_lshl_b32 s34, s34, 2")
    A("  s_min_u32 s34, s34, s38")
    A("  s_min_u32 s34, s34, s39            ; P")
    A("  s_add_u32 s35, s38, s39")
    A("  s_sub_u32 s35, s35, s34            ; T")
    A("  s_cmp_lg_u32 s35, 303")
    A("  s_cselect_b32 s41, 4, 0")
    A("  s_or_b32 s69, s69, s41")
    A("  s_lshl_b32 s35, s35, 10            ; 4T*256")
    A("  s_mul_i32 s36, s35, s86")
    A("  s_add_u32 s37, s36, s35")
    A("  s_mul_hi_u32 s36, s36, s80         ; lo")
    A("  s_mul_hi_u32 s37, s37, s80         ; hi")
    A("  s_sub_u32 s41, s34, s38")
    A("  s_add_u32 s41, s41, 256            ; P - n0 + 256")
    A("  s_lshr_b32 s40, s36, 2")
    A("  v_add_u32 v12, s40, v1             ; i")
    A("  v_cmp_gt_u32 vcc, s38, v12         ; i < n0")
    A("  v_add_u32 v13, s41, v12")
    A("  v_add_u32 v14, 27, v12")
    A("  v_cndmask_b32 v13, v13, v12, vcc   ; e")
    A("  v_cmp_gt_u32 vcc, 229, v12")
    A("  v_and_b32 v13, 0x1ff, v13")
    A("  v_lshlrev_b32 v13, 2, v13")
    A("  v_cndmask_b32 v14, v14, v12, vcc")
    A("  v_lshlrev_b32 v12, 2, v12")
    A("  s_waitcnt lgkmcnt(0)")
    A(f"  ds_read_b32 v13, v13 offset:{LDS_TAB}")
    A("  v_cmp_gt_u32 s[42:43], s37, v12    ; 4i < hi")
    A("  s_lshl_b32 s44, s36, 2")
    A("  s_sub_u32 s44, 3, s44              ; adj")
    A("  s_lshl_b32 s45, s37, 2             ; 4hi")
    A("  s_min_u32 s46, s32, s45")
    A("  s_add_u32 s46, s46, s44            ; a0'")
    A("  s_lshl_b32 s47, s34, 4             ; 16P")
    A("  s_min_u32 s48, s47, s33")
    A("  s_min_u32 s48, s48, s45")
    A("  s_add_u32 s48, s48, s44            ; a1'")
    A("  s_lshl_b32 s49, s38, 4             ; 16n0")
    A("  s_sub_u32 s50, s49, s47")
    A("  s_add_u32 s50, s50, s33")
    A("  s_min_u32 s50, s50, s45")
    A("  s_add_u32 s50, s50, s44            ; c1'")
    A("  s_add_u32 s49, s49, s44            ; b1'")
    A("  v_mov_b32 v30, 0")
    for lane, sr in [(0, "s46"), (4, "s48"), (5, "s49"), (6, "s50"), (8, "s38"), (9, "s41"), (10, "s36"), (11, "s37")]:
        A(f"  v_writelane_b32 v30, {sr}, {lane}")
    A("  s_waitcnt lgkmcnt(0)")
    A("  v_cmp_ne_u32 vcc, v13, v14")
    A("  s_and_b64 vcc, vcc, s[42:43]")
    A("  s_cselect_b32 s41, 4, 0")
    A("  s_or_b32 s69, s69, s41")
    A("  v_writelane_b32 v30, s69, 3")
    A("  v_writelane_b32 v30, s69, 7")
    A("  s_mov_b64 exec, 0xfff")
    A(f"  ds_write_b32 v6, v30 offset:{LDS_DESC}")
    A("  s_mov_b64 exec, -1")
    A("  s_waitcnt lgkmcnt(0)")
    stamp(3)
    A("  s_barrier                          ; #0")
    A("  s_branch L_cons")

    A("L_comp2:")
    A(f"  v_lshlrev_b32 v{VV}, 12, v{VG}")
    A(f"  v_lshl_add_u32 v{VV}, v3, 4, v{VV}       ; voffV = g*4096 + 16n")
    A("  s_mov_b64 s[24:25], s[8:9]")
    A(f"  s_mov_b32 s26, {KVBYTES}")
    A("  s_mov_b32 s27, 0x20000")
    A(f"  v_lshlrev_b32 v{VB}, 4, v{VB}")
    A("  v_and_b32 v13, 1, v14")
    A("  v_lshlrev_b32 v13, 4, v13")
    A("  v_mov_b32 v2, 0xffff")
    A("  v_lshlrev_b32 v13, v13, v2         ; 0xffff << 16*(u&1)")
    A("  v_cmp_gt_u32 vcc, 2, v14")
    A(f"  v_lshlrev_b32 v{VH16}, 4, v15        ; h*16")
    A(f"  v_lshl_add_u32 v{VAMAX}, v{VG}, 2, v{VH16}   ; h*16+g*4")
    A("  v_cndmask_b32 v12, 0, v13, vcc     ; mask0")
    A("  v_xor_b32 v13, v12, v13            ; mask1")
    A(f"  v_mov_b32 v{VM}, {f32(-1e28)}")
    A(f"  v_mov_b32 v{VNEG}, {f32(-1e30)}")
    A(f"  v_mov_b32 v{VL}, 0")
    for i in range(8):
        A(f"  v_mov_b32 v{O+i}, 0")
    A("  s_lshl_b32 s90, s84, 11")
    A(f"  v_lshl_add_u32 v{VSLOT}, v1, 4, s90")
    A(f"  s_mov_b32 s87, {f32(C)}")
    A("  s_mov_b32 s88, 0xffffff00")
    A("  v_mov_b32 v2, 1")
    A("  v_mov_b32 v3, 0")
    stamp(2)
    A("  s_barrier                          ; #0")
    A(f"  ds_read_b128 v[{D}:{D+3}], v{VB} offset:{LDS_DESC}")
    stamp(3)

    def mkmask(nu):
        A(f"  s_mul_i32 s90, s84, {4*nu}")
        A(f"  v_add_u32 v14, s90, v{VG}            ; B'")
        for k in range(3):
            A(f"  v_sub_u32 v{D+k}, v{D+k}, v14")
        for k in range(3):
            A(f"  v_ashrrev_i32 v{D+k}, 2, v{D+k}")
        for k in range(3):
            A(f"  v_med3_i32 v{D+k}, v{D+k}, 0, 31")
        for k in range(3):
            A(f"  v_bfm_b32 v{D+k}, v{D+k}, 0")
        A(f"  v_bfi_b32 v{VMSK}, v{D+1}, 0, v{D+2}     ; c & ~b")
        A(f"  v_or_b32 v{VMSK}, v{VMSK}, v{D}")
    def qk_mfma(js, kreg, treg):
        for j in js:
            A(f"  v_mfma_f32_16x16x32_bf16 v[{treg(j)}:{treg(j)+3}], v[{kreg(j)}:{kreg(j)+3}], v[{Q}:{Q+3}], 0")
    def qk_rest(js, treg):
        assert len(js) >= 3
        for k in range(4):
            for j in js:
                q = f"quad_perm:[{k},{k},{k},{k}] row_mask:0xf bank_mask:0xf"
                if k == 0:
                    A(f"  v_mov_b32_dpp v{S+j}, v{treg(j)} {q}")
                else:
                    A(f"  v_add_f32_dpp v{S+j}, v{treg(j)+k}, v{S+j} {q}")
        for j in js:
            A(f"  v_bfe_i32 v{treg(j)}, v{VMSK}, {j}, 1")
        for j in js:
            A(f"  v_bfi_b32 v{S+j}, v{treg(j)}, v{S+j}, v{VNEG}")
        js = list(js)
        while js:
            if len(js) >= 2:
                A(f"  v_max3_f32 v{VM}, v{S+js[0]}, v{S+js[1]}, v{VM}"); js = js[2:]
            else:
                A(f"  v_max_f32 v{VM}, v{S+js[0]}, v{VM}"); js = js[1:]
    def arrive():
        A("  s_mov_b32 exec_lo, 0x11111111")
        A("  s_mov_b32 exec_hi, 0x11111111")
        A(f"  ds_max_f32 v{VAMAX}, v{VM} offset:{LDS_MAX}")
        A("  s_mov_b64 exec, 1")
        A(f"  ds_add_u32 v3, v2 offset:{LDS_CNT}")
        A("  s_mov_b64 exec, -1")
    def waitmax(tag):
        A(f"L_wm{tag}:")
        A(f"  ds_read_b32 v{Y+4}, v3 offset:{LDS_CNT}")
        A(f"  ds_read_b128 v[{Y}:{Y+3}], v{VH16} offset:{LDS_MAX}")
        A("  s_waitcnt lgkmcnt(0)")
        A(f"  v_cmp_ne_u32 vcc, {W}, v{Y+4}")
        A(f"  s_cbranch_vccnz L_wm{tag}")
        A(f"  v_max3_f32 v{VM}, v{Y}, v{Y+1}, v{Y+2}")
        A(f"  v_max_f32 v{VM}, v{VM}, v{Y+3}")
        A(f"  v_mul_f32 v{VM}, s87, v{VM}          ; M*c")
        A(f"  v_and_b32 v{VM}, s88, v{VM}")
    def pcalc(nu):
        for j in range(nu):
            A(f"  v_fma_f32 v{S+j}, v{S+j}, s87, -v{VM}")
        for j in range(nu):
            A(f"  v_exp_f32 v{S+j}, v{S+j}")
        for j in range(nu):
            A(f"  v_add_f32 v{VL}, v{VL}, v{S+j}")
            A(f"  v_cvt_pk_bf16_f32 v{S+j}, v{S+j}, v{S+j}")
        A(f"  v_mov_b32 v14, v{VL}")
        A("  v_mul_u32_u24 v15, 40, v15         ; h*40")
        A("  s_lshl_b32 s90, s84, 2")
        A(f"  v_permlane16_swap_b32 v{VL}, v14")
        A(f"  v_add_f32 v{VL}, v{VL}, v14")
        A(f"  v_mov_b32 v14, v{VL}")
        A("  v_add_u32 v15, s90, v15")
        A("  s_nop 0")
        A(f"  v_permlane32_swap_b32 v{VL}, v14")
        A(f"  v_add_f32 v{VL}, v{VL}, v14")
        A("  s_mov_b64 exec, 0x1111")
        A(f"  ds_write_b32 v15, v{VL} offset:{LDS_L}")
        A("  s_mov_b64 exec, 1")
        A(f"  ds_add_u32 v3, v2 offset:{LDS_CNT2}")
        A("  s_mov_b64 exec, -1")
        for j in range(nu):
            A(f"  v_and_b32 v{Y+2*j}, v{S+j}, v12")
            A(f"  v_and_b32 v{Y+2*j+1}, v{S+j}, v13")
        A("  s_lshl_b32 s90, s84, 10")
        A("  v_lshl_add_u32 v14, v1, 4, s90")
        A("  v_add_u32 v15, s81, v14")
        A(f"  v_add_u32 v12, {BOFF}, v15")
    def pv(nu, vreg):
        for j in range(nu):
            A(f"  s_waitcnt vmcnt({nu-1-j})")
            A(f"  v_mfma_f32_16x16x16_bf16 v[{O}:{O+3}], v[{Y+2*j}:{Y+2*j+1}], v[{vreg(j)}:{vreg(j)+1}], v[{O}:{O+3}]")
            A(f"  v_mfma_f32_16x16x16_bf16 v[{O+4}:{O+7}], v[{Y+2*j}:{Y+2*j+1}], v[{vreg(j)+2}:{vreg(j)+3}], v[{O+4}:{O+7}]")

    kreg = lambda j: X + 4 * j
    treg = lambda j: Y + 4 * j
    A("  s_waitcnt vmcnt(6)")
    qk_mfma([0, 1, 2], kreg, treg)
    A("  s_waitcnt lgkmcnt(0)")
    A(f"  v_cmp_ne_u32 vcc, 0, v{D+3}")
    A("  s_cbranch_vccnz L_general")
    mkmask(NU)
    A("  s_waitcnt vmcnt(3)")
    qk_mfma([3, 4, 5], kreg, treg)
    qk_rest([0, 1, 2], treg)
    A("  s_waitcnt vmcnt(0)")
    stamp(4)
    qk_mfma([6, 7, 8], kreg, treg)
    qk_rest([3, 4, 5], treg)
    qk_rest([6, 7, 8], treg)
    arrive()
    stamp(5)
    for j in range(NU):
        r = X + 36 + 4 * j
        A(f"  buffer_load_dwordx4 v[{r}:{r+3}], v{VV}, s[24:27], s{SO+j} offen{NT}")
    stamp(6)
    waitmax("f")
    stamp(7)
    pcalc(NU)
    stamp(8)
    pv(NU, lambda j: X + 36 + 4 * j)
    A("L_tail:")
    stamp(9)
    A("  s_cmp_gt_u32 s84, 1")
    A("  s_nop 5")
    A(f"  ds_write_b128 v{VSLOT}, v[{O}:{O+3}]")
    A(f"  ds_write_b128 v{VSLOT}, v[{O+4}:{O+7}] offset:1024")
    A("  s_waitcnt lgkmcnt(0)")
    A("  s_barrier                          ; #2")
    A("  s_cbranch_scc1 L_fin")
    for w in range(W):
        A(f"  ds_read_b128 v[{X+4*w}:{X+4*w+3}], v14 offset:{w*SLOT}")
    A(f"  ds_read_b128 v[{D}:{D+3}], v3 offset:{LDS_TAG}")
    for w in range(1, W):
        A(f"  s_waitcnt lgkmcnt({W-w})")
        A(f"  v_pk_add_f32 v[{X}:{X+1}], v[{X}:{X+1}], v[{X+4*w}:{X+4*w+1}]")
        A(f"  v_pk_add_f32 v[{X+2}:{X+3}], v[{X+2}:{X+3}], v[{X+4*w+2}:{X+4*w+3}]")
    A("  s_waitcnt lgkmcnt(0)")
    for k in range(4):
        A(f"  v_and_or_b32 v{X+k}, v{X+k}, s88, v{D+k}")
    if "noloc" not in xs:
        A(f"  global_store_dwordx4 v15, v[{X}:{X+3}], s[18:19] {locflags}")
    if "nopub" not in xs:
        A(f"  global_store_dwordx4 v12, v[{X}:{X+3}], s[18:19] {pubflags}")
    A("L_fin:")
    if "ampw" in xs:
        A("  s_memrealtime s[66:67]")
        A("  s_waitcnt lgkmcnt(0)")
        A("  s_sub_u32 s68, s72, s62")
        A("  s_mul_i32 s68, s68, 50")
        A("L_ampw:")
        A("  s_sleep 4")
        A("  s_memrealtime s[70:71]")
        A("  s_waitcnt lgkmcnt(0)")
        A("  s_sub_u32 s70, s70, s66")
        A("  s_cmp_lt_u32 s70, s68")
        A("  s_cbranch_scc1 L_ampw")
    stamp(10)
    stamp_store()
    A("L_end:")
    A("  s_endpgm")

    A("L_non:")
    A("  s_waitcnt vmcnt(0)")
    A("  v_cmp_eq_u32 vcc, 0, v44")
    A("  s_cbranch_vccz L_non_ok")
    A("  s_sleep 8")
    A("  global_load_dword v44, v8, s[16:17] sc1")
    A("  s_sub_u32 s96, s96, 1")
    A("  s_cbranch_scc0 L_non")
    A("  s_waitcnt vmcnt(0)")
    A("L_non_ok:")
    stamp(5)
    if "tlbw" in xs:
        A("  s_mov_b64 exec, 1")
        A("  global_load_dword v72, v3, s[18:19] offset:2048")
        A("  global_load_ushort v73, v9, s[14:15]")
        A("  s_mov_b64 exec, -1")
    if "prepoll" in xs:
        for k in range(3):
            A(f"  global_load_dwordx4 v[{60+4*k}:{63+4*k}], v{10+k}, s[18:19] {pollflags}")
    if "prepollml" in xs:
        for k in range(3):
            A(f"  global_load_dwordx4 v[{48+4*k}:{51+4*k}], v{13+k}, s[18:19] offset:2048 {pollflags}")
    A("  v_bfe_u32 v45, v44, 8, 8")
    A("  v_bfe_u32 v46, v44, 16, 8")
    A("  v_lshrrev_b32 v47, 24, v44")
    A("  v_and_b32 v44, 0xff, v44")
    A("  s_mov_b64 exec, 1")
    A(f"  ds_write_b128 v8, v[44:47] offset:{LDS_TAG}")
    A("  s_mov_b64 exec, 0xff" if "mlfull" in xs else "  s_mov_b64 exec, 0xf")
    A("L_lw:")
    A("  s_sleep 2")
    A(f"  ds_read_b32 v40, v8 offset:{LDS_CNT2}")
    A(f"  ds_read_b128 v[16:19], v4 offset:{LDS_MAX}")
    for k in range(5):
        A(f"  ds_read_b64 v[{20+2*k}:{21+2*k}], v2 offset:{LDS_L+8*k}")
    A("  s_waitcnt lgkmcnt(0)")
    A(f"  v_cmp_ne_u32 vcc, {W}, v40")
    A("  s_cbranch_vccnz L_lw")
    A("  v_max3_f32 v16, v16, v17, v18")
    A("  v_pk_add_f32 v[20:21], v[20:21], v[22:23]")
    A("  v_pk_add_f32 v[24:25], v[24:25], v[26:27]")
    A("  v_max_f32 v16, v16, v19")
    A("  v_pk_add_f32 v[20:21], v[20:21], v[28:29]")
    A("  v_mul_f32 v16, s87, v16")
    A("  v_pk_add_f32 v[20:21], v[20:21], v[24:25]")
    A("  v_and_or_b32 v16, v16, s88, v44")
    A("  v_add_f32 v17, v20, v21")
    A("  v_mov_b32 v18, v46")
    A("  v_mov_b32 v19, v47")
    A("  v_and_or_b32 v17, v17, s88, v45")
    if "noloc" not in xs and "nomlloc" not in xs:
        A(f"  global_store_dwordx4 v3, v[16:19], s[18:19] offset:2048 {locflags}")
    A(f"  v_add_u32 v3, {BOFF}, v3")
    if "nomlpub" not in xs:
        A(f"  global_store_dwordx4 v3, v[16:19], s[18:19] offset:2048 {pubflags}")
    A("  s_mov_b64 exec, -1")
    A(f"  s_mov_b32 s96, {n1}")
    A("  s_mov_b32 s78, 0")
    if "latepre" in xs:
        for k in range(3):
            A(f"  global_load_dwordx4 v[{60+4*k}:{63+4*k}], v{10+k}, s[18:19] {pollflags}")
        for k in range(3):
            A(f"  global_load_dwordx4 v[{48+4*k}:{51+4*k}], v{13+k}, s[18:19] offset:2048 {pollflags}")
    if "mlearly" in xs:
        A("  s_nop 0")
        for k in range(3):
            A(f"  global_load_dwordx4 v[{16+4*k}:{19+4*k}], v{13+k}, s[18:19] offset:2048 {pollflags}")
    stamp(6)
    A("  s_barrier                          ; #2")
    stamp(8)
    if "ampk" in xs and "p_b2" in xs:
        A("  s_memrealtime s[72:73]")
    if "nocons" in xs:
        A("  s_branch L_cend")
    if "outonly" in xs:
        A("  s_branch L_o_done")
    if "mlearly" in xs:
        A("  s_branch L_o")
    A("L_ml:")
    for k in range(3):
        A(f"  global_load_dwordx4 v[{16+4*k}:{19+4*k}], v{13+k}, s[18:19] offset:2048 {pollflags}")
    A("L_o:")
    for k in range(3):
        A(f"  global_load_dwordx4 v[{28+4*k}:{31+4*k}], v{10+k}, s[18:19] {pollflags}")
    A("  s_cmp_lg_u32 s89, 0")
    A("  s_cbranch_scc1 L_chk")
    A("  s_waitcnt vmcnt(3)")
    def check(base):
        for k in range(3):
            for i in range(4):
                A(f"  v_xor_b32 v{base+4*k+i}, v{base+4*k+i}, v{44+i}")
        A(f"  v_or3_b32 v40, v{base}, v{base+1}, v{base+2}")
        A(f"  v_or3_b32 v41, v{base+3}, v{base+4}, v{base+5}")
        A(f"  v_or3_b32 v42, v{base+6}, v{base+7}, v{base+8}")
        A(f"  v_or3_b32 v40, v{base+9}, v{base+10}, v40")
        A(f"  v_or3_b32 v41, v{base+11}, v41, v42")
        A("  v_or_b32 v40, v40, v41")
        A("  v_and_b32 v40, 0xff, v40")
        A("  v_cmp_ne_u32 vcc, 0, v40")
    check(16)
    A("  s_cbranch_vccnz L_retry_ml")
    A("L_wts:")
    A("  v_cndmask_b32 v20, v20, v5, s[52:53]")
    A("  v_cndmask_b32 v24, v24, v5, s[54:55]")
    A("  v_max3_f32 v40, v16, v20, v24")
    def xred(op):
        A("  s_nop 1")
        A(f"  {op}_dpp v40, v40, v40 row_ror:8 row_mask:0xf bank_mask:0xf")
        A("  v_mov_b32 v41, v40")
        A("  s_nop 1")
        A("  v_permlane16_swap_b32 v40, v41")
        A(f"  {op} v40, v40, v41")
        A("  v_mov_b32 v41, v40")
        A("  s_nop 1")
        A("  v_permlane32_swap_b32 v40, v41")
        A(f"  {op} v40, v40, v41")
    xred("v_max_f32")
    for k in range(3):
        A(f"  v_sub_f32 v{16+4*k}, v{16+4*k}, v40")
    for k in range(3):
        A(f"  v_exp_f32 v{16+4*k}, v{16+4*k}")
    A("  v_mul_f32 v40, v16, v17")
    A("  v_fmac_f32 v40, v20, v21")
    A("  v_fmac_f32 v40, v24, v25")
    xred("v_add_f32")
    A("  v_rcp_f32 v40, v40")
    A("  s_mov_b32 s89, 1")
    for k in range(3):
        A(f"  v_mul_f32 v{16+4*k}, v{16+4*k}, v40")
    stamp(9)
    A("L_chk:")
    A("  s_sub_u32 s96, s96, 1")
    A("  s_waitcnt vmcnt(0)")
    A("  s_cbranch_scc1 L_switch")
    check(28)
    if psleep:
        A("  s_cbranch_vccz L_o_done")
        A(f"  s_sleep {psleep}")
        A("  s_branch L_o")
    else:
        A("  s_cbranch_vccnz L_o")
    A("L_o_done:")
    stamp(10)
    for i in range(4):
        A(f"  v_mul_f32 v{28+i}, v16, v{28+i}")
    for k in (1, 2):
        for i in range(4):
            A(f"  v_fmac_f32 v{28+i}, v{16+4*k}, v{28+4*k+i}")
    A("  s_nop 0")
    A("  v_permlane16_swap_b32 v28, v29")
    A("  v_permlane16_swap_b32 v30, v31")
    A("  v_add_f32 v28, v28, v29")
    A("  v_add_f32 v30, v30, v31")
    A("  s_nop 1")
    A("  v_permlane32_swap_b32 v28, v30")
    A("  v_add_f32 v28, v28, v30")
    A("  s_nop 1")
    A("  v_add_f32_dpp v28, v28, v28 row_ror:8 row_mask:0xf bank_mask:0xf")
    A("  s_mov_b32 exec_lo, 0x00ff00ff")
    A("  s_mov_b32 exec_hi, 0x00ff00ff")
    A("  v_cvt_pk_bf16_f32 v28, v28, v28")
    A(f"  global_store_short v9, v28, s[14:15] {outflags}")
    A("L_cend:")
    if "amp" in xs or "ampc" in xs or "ampk" in xs:
        A("  s_waitcnt vmcnt(0)")
        A("  s_memrealtime s[66:67]")
        A("  s_memtime s[70:71]")
        A("  s_waitcnt lgkmcnt(0)")
        if "amp" in xs:
            A("  s_sub_u32 s68, s66, s62")
            A("  s_mul_i32 s68, s68, 9")
        elif "ampk" in xs:
            A("  s_sub_u32 s68, s72, s62")
            A("  s_mul_i32 s68, s68, 9")
        else:
            A("  s_sub_u32 s68, s70, s64")
            A("  s_mul_i32 s68, s68, 3")
            A("  s_lshr_b32 s68, s68, 3")
        A("L_amp:")
        A("  s_sleep 4")
        A("  s_memrealtime s[70:71]")
        A("  s_waitcnt lgkmcnt(0)")
        A("  s_sub_u32 s70, s70, s66")
        A("  s_cmp_lt_u32 s70, s68")
        A("  s_cbranch_scc1 L_amp")
    if stamps:
        A("  s_waitcnt vmcnt(0)")
        stamp(11)
        A("  s_sub_u32 s96, %d, s96" % n1)
        A(f"  v_writelane_b32 v{VST}, s96, 29")
        stamp_store()
    A("  s_endpgm")
    A("L_retry_ml:")
    A("  s_sub_u32 s96, s96, 1")
    A("  s_waitcnt vmcnt(0)")
    A("  s_cbranch_scc0 L_ml")
    A("L_switch:")
    A("  s_cmp_lg_u32 s78, 0")
    A("  s_cbranch_scc1 L_cend")
    A("  s_mov_b32 s78, 1")
    A(f"  s_mov_b32 s96, {SPIN}")
    for k in range(6):
        A(f"  v_add_u32 v{10+k}, {BOFF}, v{10+k}")
    A("  s_cmp_lg_u32 s89, 0")
    A("  s_cbranch_scc1 L_o")
    A("  s_branch L_ml")

    A("L_cons:")
    stamp(4)
    if "ampk" in xs and "p_b0" in xs:
        A("  s_memrealtime s[72:73]")
    A(f"  s_mov_b32 s96, {SPIN}")
    A("  global_load_dword v44, v8, s[16:17] sc1" if "nononce" not in xs else "  v_mov_b32 v44, 0x12345679")
    A("  s_and_b32 s93, s2, 7               ; x")
    A("  s_lshl_b32 s85, s93, 1")
    A("  s_bfe_u32 s86, s2, 0x40003         ; slice")
    A("  s_sub_u32 s92, 31, s79")
    A("  s_sub_u32 s90, s79, 1")
    A("  s_lshl_b32 s91, s79, 3")
    A("  s_bitcmp1_b32 s2, 7")
    A("  s_cselect_b32 s92, s92, s90        ; n-1")
    A("  s_cselect_b32 s91, s91, 0")
    A("  s_addc_u32 s85, s85, 0")
    A("  s_add_u32 s91, s91, s93")
    A("  v_lshrrev_b32 v2, 3, v1            ; pp")
    A("  v_and_b32 v9, 7, v1                ; q")
    A("  v_add_u32 v3, 8, v2")
    A("  v_add_u32 v5, 16, v2")
    A("  v_cmp_lt_u32 s[52:53], s92, v3     ; absent k=1")
    A("  v_cmp_lt_u32 s[54:55], s92, v5     ; absent k=2")
    A("  v_min_u32 v3, s92, v3")
    A("  v_min_u32 v5, s92, v5")
    A("  s_bfe_u32 s94, s86, 0x20001        ; h")
    A("  s_lshl_b32 s95, s94, 4")
    A("  s_lshl_b32 s97, s86, 7")
    A("  v_lshl_add_u32 v7, v9, 4, s97")
    for k, r in enumerate([2, 3, 5]):
        A(f"  v_lshl_add_u32 v{r}, v{r}, 3, s91")
        A(f"  v_mul_u32_u24 v{r}, {rec}, v{r}")
        A(f"  v_add_u32 v{10+k}, v{r}, v7           ; O addr")
        A(f"  v_add_u32 v{13+k}, s95, v{r}")
    A("  s_lshr_b32 s95, s94, 1")
    A("  s_lshl_b32 s95, s95, 13")
    A("  s_and_b32 s97, s86, 3")
    A("  s_lshl_b32 s97, s97, 7             ; (h&1)*256 + k*128")
    A("  s_add_u32 s95, s95, s97")
    A("  s_lshl_b32 s97, s85, 9")
    A("  s_add_u32 s95, s95, s97")
    A("  s_and_b32 s97, s86, 8              ; plane*8")
    A("  s_add_u32 s95, s95, s97")
    A("  v_lshrrev_b32 v7, 4, v1            ; rho")
    A("  v_lshlrev_b32 v7, 1, v7")
    A("  v_lshl_add_u32 v9, v9, 4, v7")
    A("  v_add_u32 v9, s95, v9")
    A("  v_mul_u32_u24 v2, 40, v1")
    A("  v_add_u32 v3, s81, v4")
    A(f"  v_mov_b32 v5, {f32(-3e38)}")
    A(f"  s_mov_b32 s87, {f32(C)}")
    A("  s_mov_b32 s88, 0xffffff00")
    A("  s_mov_b32 s89, 0")
    if "prewrite" in xs:
        for k in range(4):
            A(f"  v_mov_b32 v{60+k}, 0")
        A("  global_store_dwordx4 v3, v[60:63], s[18:19]")
        A("  global_store_dwordx4 v3, v[60:63], s[18:19] offset:1024")
        A("  s_mov_b64 exec, 0xff")
        A("  global_store_dwordx4 v3, v[60:63], s[18:19] offset:2048")
        A("  s_mov_b64 exec, -1")
    A("  s_branch L_non")
    A("L_general:")
    A(f"  ds_read_b128 v[{S}:{S+3}], v3 offset:{LDS_DESC+32}")
    A(f"  v_readfirstlane_b32 s74, v{D+3}")
    mkmask(NUG)
    A(f"  s_mul_i32 s90, s84, {NUG}")
    A("  v_add_u32 v8, s90, v1")
    A("  s_waitcnt vmcnt(0) lgkmcnt(0)")
    A(f"  v_add_u32 v8, v8, v{S+2}             ; unit")
    A("  v_lshrrev_b32 v9, 2, v8            ; i")
    A(f"  v_cmp_lt_u32 vcc, v9, v{S}")
    A(f"  v_add_u32 v10, v9, v{S+1}")
    A("  s_nop 0")
    A("  v_cndmask_b32 v10, v10, v9, vcc")
    A("  v_and_b32 v10, 0x1ff, v10")
    A("  v_lshlrev_b32 v10, 2, v10")
    A(f"  ds_read_b32 v10, v10 offset:{LDS_TAB}")
    A(f"  v_cmp_lt_u32 vcc, v8, v{S+3}")
    A("  v_and_b32 v9, 3, v8")
    A("  v_lshl_add_u32 v9, v9, 14, s91")
    A(f"  v_mov_b32 v11, {KVBYTES}")
    A("  s_waitcnt lgkmcnt(0)")
    A("  v_min_u32 v10, 384, v10")
    A("  v_lshl_add_u32 v9, v10, 16, v9")
    A("  v_cndmask_b32 v9, v11, v9, vcc")
    A("  s_nop 0")
    for j in range(NUG):
        A(f"  v_readlane_b32 s{SO+j}, v9, {j}")
    A("  s_and_b32 s75, s74, 1")
    A("  s_bfe_u32 s76, s74, 0x10001")
    A("  s_mul_i32 s75, s75, 0x00ff00ff")
    A("  s_mul_i32 s76, s76, 0xff00ff00")
    A("  s_or_b32 s75, s75, s76")
    for j in range(NUG):
        r = X + 4 * j
        A(f"  buffer_load_dwordx4 v[{r}:{r+3}], v{VK}, s[20:23], s{SO+j} offen{NT}")
    A("  s_mov_b32 exec_lo, s75")
    A("  s_mov_b32 exec_hi, s75")
    for i in range(4):
        A(f"  v_mov_b32 v{Q+i}, 0")
    A("  s_mov_b64 exec, -1")
    A("  s_waitcnt vmcnt(0)")
    tg = lambda j: Y + 4 * (j % 4)
    for g in range(NUG // 4):
        js = list(range(4 * g, 4 * g + 4))
        qk_mfma(js, kreg, tg)
        A("  s_nop 4")
        qk_rest(js, tg)
    arrive()
    for j in range(NUG):
        r = X + 4 * j
        A(f"  buffer_load_dwordx4 v[{r}:{r+3}], v{VV}, s[24:27], s{SO+j} offen{NT}")
    waitmax("g")
    pcalc(NUG)
    pv(NUG, kreg)
    A("  s_branch L_tail")
    A('.section .rodata,"a"')
    A(".p2align 6")
    A(f".amdhsa_kernel {NAME}_kernel")
    A("  .amdhsa_next_free_vgpr 168")
    A("  .amdhsa_next_free_sgpr 102")
    A("  .amdhsa_accum_offset 168")
    A("  .amdhsa_group_segment_fixed_size 0")
    A("  .amdhsa_kernarg_size 64")
    A("  .amdhsa_user_sgpr_count 2")
    A("  .amdhsa_user_sgpr_kernarg_segment_ptr 1")
    A("  .amdhsa_system_sgpr_workgroup_id_x 1")
    A(".end_amdhsa_kernel")
    return "\n".join(L) + "\n"

if __name__ == "__main__":
    import argparse
    ap = argparse.ArgumentParser()
    ap.add_argument("-o", required=True)
    ap.add_argument("--stamps", action="store_true")
    ap.add_argument("--no-nt", action="store_true")
    ap.add_argument("--no-codepf", action="store_true")
    ap.add_argument("--poll", default="sc1")
    ap.add_argument("--pub", default="sc1")
    ap.add_argument("--out", default="")
    ap.add_argument("--cnts", default="14,18,16,16")
    ap.add_argument("--loc", default="")
    ap.add_argument("--n1", type=int, default=64)
    ap.add_argument("--xs", default="")
    ap.add_argument("--rec", type=int, default=2304)
    ap.add_argument("--psleep", type=int, default=0)
    a = ap.parse_args()
    open(a.o, "w").write(gen(a.stamps, not a.no_nt, a.poll, not a.no_codepf, a.pub,
                             tuple(int(x) for x in a.cnts.split(",")), a.out, tuple(a.xs.split(",")), a.rec, a.psleep, a.loc, a.n1))
```

```python
import sys, math, struct

NAME = "standalone__paged_block_table_kv_radixattention__decode"
HDR = open("cdna_kernels/%s.s.ref" % NAME).read().split("; Override launch")[0]

def f32(x):
    return "0x%08x" % struct.unpack("<I", struct.pack("<f", x))[0]

W = 10
import os
NU = int(os.environ.get('NU', '10'))
NUG = 16
KVBYTES = 25165824
SLOT = 2048
REC = 2304
BOFF = 1 << 20
LDS_TAB = W * SLOT
LDS_DESC = LDS_TAB + 2048
LDS_TAG = LDS_DESC + 48
LDS_INIT = LDS_DESC + 64
LDS_MAX = LDS_INIT
LDS_CNT = LDS_INIT + 64
LDS_CNT2 = LDS_INIT + 68
LDS_L = LDS_INIT + 80
LDS_TOTAL = LDS_INIT + 512
SPIN = 1 << 15
TSPEC, N0SPEC, GAPSPEC = 303, 229, 27

DOC = """;
; Design
"""

def gen(stamps=False, pairs=(1, 0, 2, 4, 3, 5, 7, 6), nas=(16, 13, 13, 13, 16, 16, 15, 13), xs=(), n1=64, skew=None):
    L = []
    A = L.append
    C = (128 ** -0.5) * math.log2(math.e)
    NT = " nt"
    VST = 167
    assert sorted(pairs) == list(range(8))
    TU = 4 * TSPEC
    ca = [-(-TU // n) for n in nas]
    cb = [-(-TU // (32 - n)) for n in nas]
    for n in nas:
        for m in (n, 32 - n):
            assert -(-TU // m) <= W * NU and -(-2048 // m) <= W * NUG and m <= 24
    def tab64(v):
        x = sum(b << (8 * i) for i, b in enumerate(v))
        return x & 0xffffffff, x >> 32
    def stamp(k):
        if not stamps: return
        if "lite" in xs and k != 11: return
        A("  s_memrealtime s[98:99]")
        A("  s_waitcnt lgkmcnt(0)")
        A(f"  v_writelane_b32 v{VST}, s98, {k}")
    def stamp_store():
        if not stamps: return
        A("  s_lshl_b32 s98, s2, 4")
        A("  s_add_u32 s98, s98, s84")
        A("  s_lshl_b32 s98, s98, 7")
        A("  s_add_u32 s98, s98, 0x200000")
        A("  s_mov_b64 exec, -1")
        A("  v_lshl_add_u32 v14, v1, 2, s98")
        A("  s_mov_b32 exec_hi, 0")
        A(f"  global_store_dword v14, v{VST}, s[18:19]")
    VK, VV, VMSK = 4, 5, 6
    D = 8
    Q = 16
    VM, VL, VNEG, VAMAX, VH16, VSLOT, VG, VB = 20, 21, 22, 23, 24, 25, 26, 27
    O = 28
    S = 36
    Y = 52
    X = 84
    SO = 32
    A(HDR.rstrip())
    A(f"; @launch grid=(256,1,1) block=({64*(W+1)},1,1) lds={LDS_TOTAL}")
    A(DOC.rstrip())
    A('.amdgcn_target "amdgcn-amd-amdhsa--gfx950"')
    A(".text")
    A(f".globl {NAME}_kernel")
    A(".p2align 12")
    A(".p2align 8")
    A(f".type {NAME}_kernel,@function")
    A(f"{NAME}_kernel:")
    A("  s_load_dwordx16 s[4:19], s[0:1], 0")
    A("  s_getpc_b64 s[82:83]")
    A("  v_lshrrev_b32 v14, 6, v0")
    A("  v_and_b32 v1, 63, v0")
    A("  v_readfirstlane_b32 s84, v14")
    A("  s_cmp_ge_u32 s2, 256")
    A("  s_cbranch_scc1 L_end")
    if stamps:
        A(f"  v_mov_b32 v{VST}, 0")
        A("  s_memrealtime s[98:99]")
    lo, hi = tab64([nas[x] | (pairs[x] << 5) for x in range(8)])
    A("  s_and_b32 s90, s2, 7               ; group x")
    A("  s_lshl_b32 s90, s90, 3")
    A(f"  s_mov_b32 s92, {lo:#x}")
    A(f"  s_mov_b32 s93, {hi:#x}")
    A("  s_lshr_b64 s[92:93], s[92:93], s90")
    A("  s_and_b32 s79, s92, 31")
    A("  s_bfe_u32 s77, s92, 0x30005")
    A("  s_lshl_b32 s77, s77, 1")
    A("  s_lshr_b32 s91, s2, 3              ; j")
    A("  s_sub_u32 s86, s91, s79")
    A("  s_sub_u32 s80, 32, s79")
    A("  s_cmp_ge_u32 s91, s79")
    A("  s_cselect_b32 s86, s86, s91")
    A("  s_cselect_b32 s80, s80, s79        ; #splits")
    (al, ah), (bl, bh) = tab64(ca), tab64(cb)
    A(f"  s_mov_b32 s92, {al:#x}")
    A(f"  s_mov_b32 s93, {ah:#x}")
    A(f"  s_cselect_b32 s92, {bl:#x}, s92")
    A(f"  s_cselect_b32 s93, {bh:#x}, s93")
    A("  s_addc_u32 s85, s77, 0             ; head")
    A("  s_lshl_b32 s91, s85, 8             ; head*256")
    A(f"  s_mul_i32 s81, s2, {REC}")
    A(f"  s_cmp_eq_u32 s84, {W}")
    A("  s_cbranch_scc1 L_helper")
    A("  s_lshr_b64 s[92:93], s[92:93], s90")
    A("  s_and_b32 s93, s92, 0xff")
    A("  s_mul_i32 s92, s93, s86            ; lo")
    if "upw" in xs:
        A(f"  s_add_u32 s76, s93, {W-1}")
        A(f"  s_mul_i32 s76, s76, {65536//W+1}")
        A("  s_lshr_b32 s76, s76, 16")
    A("  s_add_u32 s93, s93, s92")
    A(f"  s_min_u32 s93, s93, {TU}           ; hi")
    if "upw" in xs:
        A("  s_mul_i32 s75, s84, s76")
        A("  s_add_u32 s94, s75, s92")
        A("  s_add_u32 s95, s94, s76")
        A("  s_min_u32 s93, s93, s95")
    else:
        A(f"  s_mul_i32 s94, s84, {NU}")
        A("  s_add_u32 s94, s94, s92")
    A("  v_add_u32 v8, s94, v1")
    A(f"  v_add_u32 v9, {4*GAPSPEC}, v8")
    A(f"  v_cmp_gt_u32 vcc, {4*N0SPEC}, v8")
    A(f"  v_lshrrev_b32 v{VG}, 4, v1           ; g")
    A("  v_and_b32 v3, 15, v1               ; n")
    A("  v_cndmask_b32 v9, v9, v8, vcc")
    A("  v_cmp_gt_u32 vcc, s93, v8")
    A("  v_lshl_add_u32 v9, v9, 14, s91")
    A(f"  v_mov_b32 v10, {KVBYTES}")
    A("  v_cndmask_b32 v9, v10, v9, vcc")
    A("  v_and_b32 v14, 3, v1               ; u")
    A("  v_lshrrev_b32 v15, 2, v3           ; t = h")
    for j in range(NU):
        A(f"  v_readlane_b32 s{SO+j}, v9, {j}")
    A(f"  v_lshlrev_b32 v{VK}, 6, v{VG}")
    A(f"  v_lshl_add_u32 v{VK}, v14, 4, v{VK}      ; 64g + 16u")
    A(f"  v_lshrrev_b32 v{VB}, 3, v3")
    A("  v_and_b32 v12, 1, v15")
    A(f"  v_lshl_add_u32 v12, v12, 8, v{VK}")
    A(f"  v_lshl_add_u32 v12, v{VB}, 13, v12")
    A("  s_lshl_b32 s90, s85, 9")
    A("  v_add_u32 v12, s90, v12            ; q offset")
    A(f"  v_lshl_add_u32 v{VK}, v15, 12, v{VK}     ; voffK = t*4096 + 64g + 16u")
    A(f"  s_mov_b32 s22, {KVBYTES}")
    A("  s_mov_b32 s23, 0x20000")
    A("  s_waitcnt lgkmcnt(0)")
    if stamps:
        A(f"  v_writelane_b32 v{VST}, s98, 0")
    stamp(1)
    A("  s_mov_b64 s[20:21], s[6:7]")
    A(f"  global_load_dwordx4 v[{Q}:{Q+3}], v12, s[4:5]")
    for j in range(NU):
        r = X + 4 * j
        A(f"  buffer_load_dwordx4 v[{r}:{r+3}], v{VK}, s[20:23], s{SO+j} offen{NT}")
    A("  s_branch L_comp2")

    A("L_helper:")
    A("  s_setprio 3")
    A("  s_memrealtime s[60:61]")
    if skew is not None:
        A("  s_memrealtime s[62:63]")
    A("  v_lshlrev_b32 v2, 7, v1")
    A("  s_mov_b32 exec_hi, 0xff")
    A("  global_load_dword v3, v2, s[82:83]")
    A("  s_mov_b64 exec, -1")
    A("  v_lshlrev_b32 v4, 4, v1            ; lane*16")
    A("  v_lshlrev_b32 v6, 2, v1            ; lane*4")
    A(f"  v_mov_b32 v7, {f32(-1e28)}")
    A("  v_cmp_gt_u32 vcc, 16, v1")
    A("  v_mov_b32 v8, 0")
    A("  v_cvt_f32_u32 v10, s80")
    A("  v_cndmask_b32 v7, 0, v7, vcc")
    A("  v_rcp_f32 v10, v10")
    A(f"  ds_write_b32 v6, v7 offset:{LDS_INIT}")
    A("  s_mov_b32 s69, 0")
    A("  s_waitcnt lgkmcnt(0)")
    if stamps:
        A(f"  v_writelane_b32 v{VST}, s98, 0")
    stamp(1)
    A("  global_load_dwordx4 v[12:15], v4, s[10:11]")
    A("  global_load_dwordx4 v[16:19], v4, s[10:11] offset:1024")
    A("  s_load_dwordx2 s[32:33], s[12:13], 0")
    A("  s_cmp_lg_u32 s2, 0")
    A("  s_cbranch_scc1 L_nononce")
    if skew is not None:
        A("  v_mov_b32 v9, s60")
        A("  s_mov_b64 exec, 1")
        A("  global_store_dword v8, v9, s[16:17] offset:128 sc1")
        A("  s_mov_b64 exec, -1")
        A("  s_waitcnt vmcnt(0)")
    A("  s_lshr_b64 s[60:61], s[60:61], 2")
    A("  s_mul_i32 s60, s60, 0x9e3779b1")
    A("  s_bitset1_b32 s60, 0")
    A("  s_bfe_u32 s61, s60, 0x10008")
    A("  s_xor_b32 s60, s60, s61")
    A("  v_mov_b32 v9, s60")
    A("  s_mov_b64 exec, 1")
    A("  global_store_dword v8, v9, s[16:17] sc1")
    A("  s_mov_b64 exec, -1")
    A("  s_waitcnt vmcnt(1)")
    A("L_nononce:")
    A("  s_waitcnt lgkmcnt(0)")
    for b in range(2):
        s = 32 + b
        A(f"  s_cmp_lt_i32 s{s}, 1")
        A(f"  s_cselect_b32 s34, {1<<b}, 0")
        A(f"  s_cselect_b32 s{s}, 4096, s{s}")
        A(f"  s_or_b32 s69, s69, s34")
        A(f"  s_min_i32 s{s}, s{s}, 4096")
        A(f"  s_add_u32 s{38+b}, s{s}, 15")
        A(f"  s_lshr_b32 s{38+b}, s{38+b}, 4             ; n{b}")
    A("  s_cmp_eq_u32 s2, 0")
    A("  s_cbranch_scc1 L_btok")
    A("  s_waitcnt vmcnt(0)")
    A("L_btok:")
    stamp(2)
    A(f"  ds_write_b128 v4, v[12:15] offset:{LDS_TAB}")
    A(f"  ds_write_b128 v4, v[16:19] offset:{LDS_TAB+1024}")
    A("  v_cmp_ne_u64 s[34:35], v[12:13], v[16:17]")
    A("  v_cmp_ne_u64 s[36:37], v[14:15], v[18:19]")
    A("  s_nop 1")
    A("  s_or_b64 s[34:35], s[34:35], s[36:37]")
    A("  s_ff1_i32_b64 s34, s[34:35]")
    A("  s_lshl_b32 s34, s34, 2")
    A("  s_min_u32 s34, s34, s38")
    A("  s_min_u32 s34, s34, s39")
    A("  s_add_u32 s35, s38, s39")
    A("  s_sub_u32 s35, s35, s34")
    A(f"  s_cmp_lg_u32 s35, {TSPEC}")
    A("  s_cselect_b32 s41, 4, 0")
    A("  s_or_b32 s69, s69, s41")
    A("  s_lshl_b32 s35, s35, 2             ; units")
    A("  s_add_u32 s36, s35, s80")
    A("  v_cvt_f32_u32 v11, s36")
    A("  v_add_f32 v11, -0.5, v11")
    A("  v_mul_f32 v11, v11, v10")
    A("  v_cvt_u32_f32 v11, v11")
    A("  s_sub_u32 s41, s34, s38")
    A("  v_readfirstlane_b32 s37, v11")
    A("  s_add_u32 s41, s41, 256            ; P - n0 + 256")
    A("  s_mul_i32 s36, s37, s86            ; lo")
    A("  s_add_u32 s37, s37, s36")
    A("  s_min_u32 s37, s37, s35            ; hi")
    A("  s_lshr_b32 s40, s36, 2")
    A("  v_add_u32 v12, s40, v1")
    A("  v_cmp_gt_u32 vcc, s38, v12")
    A("  v_add_u32 v13, s41, v12")
    A(f"  v_add_u32 v14, {GAPSPEC}, v12")
    A("  v_cndmask_b32 v13, v13, v12, vcc")
    A(f"  v_cmp_gt_u32 vcc, {N0SPEC}, v12")
    A("  v_and_b32 v13, 0x1ff, v13")
    A("  v_lshlrev_b32 v13, 2, v13")
    A("  v_cndmask_b32 v14, v14, v12, vcc")
    A("  v_lshlrev_b32 v12, 2, v12")
    A("  s_waitcnt lgkmcnt(0)")
    A(f"  ds_read_b32 v13, v13 offset:{LDS_TAB}")
    A("  v_cmp_gt_u32 s[42:43], s37, v12")
    A("  s_lshl_b32 s44, s36, 2")
    A("  s_sub_u32 s44, 3, s44")
    A("  s_lshl_b32 s45, s37, 2")
    A("  s_min_u32 s46, s32, s45")
    A("  s_add_u32 s46, s46, s44")
    A("  s_lshl_b32 s47, s34, 4")
    A("  s_min_u32 s48, s47, s33")
    A("  s_min_u32 s48, s48, s45")
    A("  s_add_u32 s48, s48, s44")
    A("  s_lshl_b32 s49, s38, 4")
    A("  s_sub_u32 s50, s49, s47")
    A("  s_add_u32 s50, s50, s33")
    A("  s_min_u32 s50, s50, s45")
    A("  s_add_u32 s50, s50, s44")
    A("  s_add_u32 s49, s49, s44")
    A("  v_mov_b32 v30, 0")
    for lane, sr in [(0, "s46"), (4, "s48"), (5, "s49"), (6, "s50"), (8, "s38"), (9, "s41"), (10, "s36"), (11, "s37")]:
        A(f"  v_writelane_b32 v30, {sr}, {lane}")
    A("  s_waitcnt lgkmcnt(0)")
    A("  v_cmp_ne_u32 vcc, v13, v14")
    A("  s_and_b64 vcc, vcc, s[42:43]")
    A("  s_cselect_b32 s41, 4, 0")
    A("  s_or_b32 s69, s69, s41")
    A("  v_writelane_b32 v30, s69, 3")
    A("  v_writelane_b32 v30, s69, 7")
    A("  s_mov_b64 exec, 0xfff")
    A(f"  ds_write_b32 v6, v30 offset:{LDS_DESC}")
    A("  s_mov_b64 exec, -1")
    A("  s_waitcnt lgkmcnt(0)")
    stamp(3)
    A("  s_barrier                          ; #0")
    A("  s_branch L_cons")

    A("L_comp2:")
    A(f"  v_lshlrev_b32 v{VV}, 12, v{VG}")
    A(f"  v_lshl_add_u32 v{VV}, v3, 4, v{VV}       ; voffV = g*4096 + 16n")
    A("  s_mov_b64 s[24:25], s[8:9]")
    A(f"  s_mov_b32 s26, {KVBYTES}")
    A("  s_mov_b32 s27, 0x20000")
    A(f"  v_lshlrev_b32 v{VB}, 4, v{VB}")
    A("  v_and_b32 v13, 1, v14")
    A("  v_lshlrev_b32 v13, 4, v13")
    A("  v_mov_b32 v2, 0xffff")
    A("  v_lshlrev_b32 v13, v13, v2")
    A("  v_cmp_gt_u32 vcc, 2, v14")
    A(f"  v_lshlrev_b32 v{VH16}, 4, v15")
    A(f"  v_lshl_add_u32 v{VAMAX}, v{VG}, 2, v{VH16}")
    A("  v_cndmask_b32 v12, 0, v13, vcc")
    A("  v_xor_b32 v13, v12, v13")
    A(f"  v_mov_b32 v{VM}, {f32(-1e28)}")
    A(f"  v_mov_b32 v{VNEG}, {f32(-1e30)}")
    A("  s_lshl_b32 s90, s84, 11")
    A(f"  v_lshl_add_u32 v{VSLOT}, v1, 4, s90")
    A(f"  s_mov_b32 s87, {f32(C)}          ; log2(e)/sqrt(128)")
    A("  s_mov_b32 s88, 0xffffff00")
    A("  v_mov_b32 v2, 1")
    A("  v_mov_b32 v3, 0")
    stamp(2)
    A("  s_barrier")
    A(f"  ds_read_b128 v[{D}:{D+3}], v{VB} offset:{LDS_DESC}")
    stamp(3)

    def mkmask(nu, var=False):
        if var:
            A(f"  v_lshl_add_u32 v14, s75, 2, v{VG}")
        else:
            A(f"  s_mul_i32 s90, s84, {4*nu}")
            A(f"  v_add_u32 v14, s90, v{VG}")
        for k in range(3):
            A(f"  v_sub_u32 v{D+k}, v{D+k}, v14")
        for k in range(3):
            A(f"  v_ashrrev_i32 v{D+k}, 2, v{D+k}")
        for k in range(3):
            A(f"  v_med3_i32 v{D+k}, v{D+k}, 0, " + ("s76" if var else "31"))
        for k in range(3):
            A(f"  v_bfm_b32 v{D+k}, v{D+k}, 0")
        A(f"  v_bfi_b32 v{VMSK}, v{D+1}, 0, v{D+2}")
        A(f"  v_or_b32 v{VMSK}, v{VMSK}, v{D}")
    def qk_mfma(js, kreg, treg):
        for j in js:
            A(f"  v_mfma_f32_16x16x32_bf16 v[{treg(j)}:{treg(j)+3}], v[{kreg(j)}:{kreg(j)+3}], v[{Q}:{Q+3}], 0")
    def qk_rest(js, treg):
        assert len(js) >= 3
        for k in range(4):
            for j in js:
                q = f"quad_perm:[{k},{k},{k},{k}] row_mask:0xf bank_mask:0xf"
                if k == 0:
                    A(f"  v_mov_b32_dpp v{S+j}, v{treg(j)} {q}")
                else:
                    A(f"  v_add_f32_dpp v{S+j}, v{treg(j)+k}, v{S+j} {q}")
        for j in js:
            A(f"  v_bfe_i32 v{treg(j)}, v{VMSK}, {j}, 1")
        for j in js:
            A(f"  v_bfi_b32 v{S+j}, v{treg(j)}, v{S+j}, v{VNEG}")
        js = list(js)
        while js:
            if len(js) >= 2:
                A(f"  v_max3_f32 v{VM}, v{S+js[0]}, v{S+js[1]}, v{VM}"); js = js[2:]
            else:
                A(f"  v_max_f32 v{VM}, v{S+js[0]}, v{VM}"); js = js[1:]
    def arrive():
        A("  s_mov_b32 exec_lo, 0x11111111")
        A("  s_mov_b32 exec_hi, 0x11111111")
        A(f"  ds_max_f32 v{VAMAX}, v{VM} offset:{LDS_MAX}")
        A("  s_mov_b64 exec, 1")
        A(f"  ds_add_u32 v3, v2 offset:{LDS_CNT}")
        A("  s_mov_b64 exec, -1")
    def waitmax(tag):
        A(f"L_wm{tag}:")
        A(f"  ds_read_b32 v{Y+4}, v3 offset:{LDS_CNT}")
        A(f"  ds_read_b128 v[{Y}:{Y+3}], v{VH16} offset:{LDS_MAX}")
        A("  s_waitcnt lgkmcnt(0)")
        A(f"  v_cmp_ne_u32 vcc, {W}, v{Y+4}")
        A(f"  s_cbranch_vccnz L_wm{tag}")
        A(f"  v_max3_f32 v{VM}, v{Y}, v{Y+1}, v{Y+2}")
        A(f"  v_max_f32 v{VM}, v{VM}, v{Y+3}")
        A(f"  v_mul_f32 v{VM}, s87, v{VM}")
        A(f"  v_and_b32 v{VM}, s88, v{VM}")
    def pcalc(nu):
        for j in range(nu):
            A(f"  v_fma_f32 v{S+j}, v{S+j}, s87, -v{VM}")
        for j in range(nu):
            A(f"  v_exp_f32 v{S+j}, v{S+j}")
        A(f"  v_add_f32 v{VL}, v{S}, v{S+1}")
        for j in range(nu):
            if j >= 2:
                A(f"  v_add_f32 v{VL}, v{VL}, v{S+j}")
            A(f"  v_cvt_pk_bf16_f32 v{S+j}, v{S+j}, v{S+j}")
        A(f"  v_mov_b32 v14, v{VL}")
        A("  v_mul_u32_u24 v15, 40, v15")
        A("  s_lshl_b32 s90, s84, 2")
        A(f"  v_permlane16_swap_b32 v{VL}, v14")
        A(f"  v_add_f32 v{VL}, v{VL}, v14")
        A(f"  v_mov_b32 v14, v{VL}")
        A("  v_add_u32 v15, s90, v15")
        A("  s_nop 0")
        A(f"  v_permlane32_swap_b32 v{VL}, v14")
        A(f"  v_add_f32 v{VL}, v{VL}, v14")
        A("  s_mov_b64 exec, 0x1111")
        A(f"  ds_write_b32 v15, v{VL} offset:{LDS_L}")
        A("  s_mov_b64 exec, 1")
        A(f"  ds_add_u32 v3, v2 offset:{LDS_CNT2}")
        A("  s_mov_b64 exec, -1")
        for j in range(nu):
            A(f"  v_and_b32 v{Y+2*j}, v{S+j}, v12")
            A(f"  v_and_b32 v{Y+2*j+1}, v{S+j}, v13")
        A("  s_lshl_b32 s90, s84, 10")
        A("  v_lshl_add_u32 v14, v1, 4, s90")
        A("  v_add_u32 v15, s81, v14")
        A(f"  v_add_u32 v12, {BOFF:#x}, v15")
    def pv(nu, vreg):
        for j in range(nu):
            c0 = "0" if j == 0 else f"v[{O}:{O+3}]"
            c1 = "0" if j == 0 else f"v[{O+4}:{O+7}]"
            A(f"  s_waitcnt vmcnt({nu-1-j})")
            A(f"  v_mfma_f32_16x16x16_bf16 v[{O}:{O+3}], v[{Y+2*j}:{Y+2*j+1}], v[{vreg(j)}:{vreg(j)+1}], {c0}")
            A(f"  v_mfma_f32_16x16x16_bf16 v[{O+4}:{O+7}], v[{Y+2*j}:{Y+2*j+1}], v[{vreg(j)+2}:{vreg(j)+3}], {c1}")

    kreg = lambda j: X + 4 * j
    G0, G1, G2 = list(range(NU - 6)), list(range(NU - 6, NU - 3)), list(range(NU - 3, NU))
    treg = lambda j: Y + 4 * (j if j < NU - 3 else j - (NU - 3))
    A("  s_waitcnt vmcnt(6)")
    qk_mfma(G0, kreg, treg)
    A("  s_waitcnt lgkmcnt(0)")
    A(f"  v_cmp_ne_u32 vcc, 0, v{D+3}")
    A("  s_cbranch_vccnz L_general")
    mkmask(NU, 'upw' in xs)
    A("  s_waitcnt vmcnt(3)")
    qk_mfma(G1, kreg, treg)
    qk_rest(G0, treg)
    A("  s_waitcnt vmcnt(0)")
    stamp(4)
    qk_mfma(G2, kreg, treg)
    qk_rest(G1, treg)
    qk_rest(G2, treg)
    arrive()
    stamp(5)
    for j in range(NU):
        r = X + 4 * NU + 4 * j
        A(f"  buffer_load_dwordx4 v[{r}:{r+3}], v{VV}, s[24:27], s{SO+j} offen{NT}")
    stamp(6)
    waitmax("f")
    stamp(7)
    pcalc(NU)
    stamp(8)
    pv(NU, lambda j: X + 4 * NU + 4 * j)
    A("L_tail:")
    stamp(9)
    A("  s_cmp_gt_u32 s84, 1")
    A("  s_nop 5")
    A(f"  ds_write_b128 v{VSLOT}, v[{O}:{O+3}]")
    A(f"  ds_write_b128 v{VSLOT}, v[{O+4}:{O+7}] offset:1024")
    A("  s_waitcnt lgkmcnt(0)")
    A("  s_barrier                          ; #2")
    A("  s_cbranch_scc1 L_fin")
    for w in range(W):
        A(f"  ds_read_b128 v[{X+4*w}:{X+4*w+3}], v14 offset:{w*SLOT}")
    A(f"  ds_read_b128 v[{D}:{D+3}], v3 offset:{LDS_TAG}")
    for w in range(1, W):
        A(f"  s_waitcnt lgkmcnt({W-w})")
        A(f"  v_pk_add_f32 v[{X}:{X+1}], v[{X}:{X+1}], v[{X+4*w}:{X+4*w+1}]")
        A(f"  v_pk_add_f32 v[{X+2}:{X+3}], v[{X+2}:{X+3}], v[{X+4*w+2}:{X+4*w+3}]")
    A("  s_waitcnt lgkmcnt(0)")
    for k in range(4):
        A(f"  v_and_or_b32 v{X+k}, v{X+k}, s88, v{D+k}")
    if "noloc" not in xs:
        A(f"  global_store_dwordx4 v15, v[{X}:{X+3}], s[18:19]")
    A(f"  global_store_dwordx4 v12, v[{X}:{X+3}], s[18:19] sc1")
    A("L_fin:")
    stamp(10)
    if "lite" not in xs:
        stamp_store()
    A("L_end:")
    A("  s_endpgm")

    A("L_b2:")
    stamp(6)
    A("  s_barrier                          ; #2")
    stamp(8)
    A("L_ml:")
    for k in range(3):
        A(f"  global_load_dwordx4 v[{16+4*k}:{19+4*k}], v{13+k}, s[18:19] offset:2048 sc1")
    A("L_o:")
    for k in range(3):
        A(f"  global_load_dwordx4 v[{28+4*k}:{31+4*k}], v{10+k}, s[18:19] sc1")
    A("  s_cmp_lg_u32 s89, 0")
    A("  s_cbranch_scc1 L_chk")
    A("  s_waitcnt vmcnt(3)")
    def check(base):
        for k in range(3):
            for i in range(4):
                A(f"  v_xor_b32 v{base+4*k+i}, v{base+4*k+i}, v{44+i}")
        A(f"  v_or3_b32 v40, v{base}, v{base+1}, v{base+2}")
        A(f"  v_or3_b32 v41, v{base+3}, v{base+4}, v{base+5}")
        A(f"  v_or3_b32 v42, v{base+6}, v{base+7}, v{base+8}")
        A(f"  v_or3_b32 v40, v{base+9}, v{base+10}, v40")
        A(f"  v_or3_b32 v41, v{base+11}, v41, v42")
        A("  v_or_b32 v40, v40, v41")
        A("  v_and_b32 v40, 0xff, v40")
        A("  v_cmp_ne_u32 vcc, 0, v40")
    check(16)
    A("  s_cbranch_vccnz L_retry_ml")
    A("  v_cndmask_b32 v20, v20, v5, s[52:53]")
    A("  v_cndmask_b32 v24, v24, v5, s[54:55]")
    A("  v_max3_f32 v40, v16, v20, v24")
    def xred(op):
        A("  s_nop 1")
        A(f"  {op}_dpp v40, v40, v40 row_ror:8 row_mask:0xf bank_mask:0xf")
        A("  v_mov_b32 v41, v40")
        A("  s_nop 1")
        A("  v_permlane16_swap_b32 v40, v41")
        A(f"  {op} v40, v40, v41")
        A("  v_mov_b32 v41, v40")
        A("  s_nop 1")
        A("  v_permlane32_swap_b32 v40, v41")
        A(f"  {op} v40, v40, v41")
    xred("v_max_f32")
    for k in range(3):
        A(f"  v_sub_f32 v{16+4*k}, v{16+4*k}, v40")
    for k in range(3):
        A(f"  v_exp_f32 v{16+4*k}, v{16+4*k}")
    A("  v_mul_f32 v40, v16, v17")
    A("  v_fmac_f32 v40, v20, v21")
    A("  v_fmac_f32 v40, v24, v25")
    xred("v_add_f32")
    A("  v_rcp_f32 v40, v40")
    A("  s_mov_b32 s89, 1")
    for k in range(3):
        A(f"  v_mul_f32 v{16+4*k}, v{16+4*k}, v40")
    stamp(9)
    A("L_chk:")
    A("  s_sub_u32 s96, s96, 1")
    A("  s_waitcnt vmcnt(0)")
    A("  s_cbranch_scc1 L_switch")
    check(28)
    A("  s_cbranch_vccnz L_o")
    stamp(10)
    for i in range(4):
        A(f"  v_mul_f32 v{28+i}, v16, v{28+i}")
    for k in (1, 2):
        for i in range(4):
            A(f"  v_fmac_f32 v{28+i}, v{16+4*k}, v{28+4*k+i}")
    A("  s_nop 0")
    A("  v_permlane16_swap_b32 v28, v29")
    A("  v_permlane16_swap_b32 v30, v31")
    A("  v_add_f32 v28, v28, v29")
    A("  v_add_f32 v30, v30, v31")
    A("  s_nop 1")
    A("  v_permlane32_swap_b32 v28, v30")
    A("  v_add_f32 v28, v28, v30")
    A("  s_nop 1")
    A("  v_add_f32_dpp v28, v28, v28 row_ror:8 row_mask:0xf bank_mask:0xf")
    A("  s_mov_b32 exec_lo, 0x00ff00ff")
    A("  s_mov_b32 exec_hi, 0x00ff00ff")
    A("  v_cvt_pk_bf16_f32 v28, v28, v28")
    A("  global_store_short v9, v28, s[14:15]")
    A("L_cend:")
    if skew is not None:
        A("  s_mov_b64 exec, -1")
        A("  global_load_dword v44, v8, s[16:17] offset:128 sc1")
        A("  s_memrealtime s[66:67]")
        A("  s_waitcnt vmcnt(0) lgkmcnt(0)")
        A("  v_readfirstlane_b32 s70, v44")
        A(f"  s_cmp_lg_u32 s2, {skew % 100}")
        A("  s_cbranch_scc1 L_noamp")
        A("  s_sub_u32 s68, s62, s70" if skew < 100 else "  s_sub_u32 s68, s66, s70")
        A("  s_add_u32 s68, s68, 200" if skew < 100 else "  s_nop 0")
        A("  s_mul_i32 s68, s68, 20")
        A("  s_min_u32 s68, s68, 30000")
        A("L_amp:")
        A("  s_sleep 4")
        A("  s_memrealtime s[70:71]")
        A("  s_waitcnt lgkmcnt(0)")
        A("  s_sub_u32 s70, s70, s66")
        A("  s_cmp_lt_u32 s70, s68")
        A("  s_cbranch_scc1 L_amp")
        A("L_noamp:")
    if stamps:
        A("  s_waitcnt vmcnt(0)")
        stamp(11)
        A("  s_sub_u32 s96, %d, s96" % n1)
        A(f"  v_writelane_b32 v{VST}, s96, 29")
        stamp_store()
    A("  s_endpgm")
    A("L_retry_ml:")
    A("  s_sub_u32 s96, s96, 1")
    A("  s_waitcnt vmcnt(0)")
    A("  s_cbranch_scc0 L_ml")
    A("L_switch:                            ; plain copies did not arrive: use the write-through copies")
    A("  s_cmp_lg_u32 s78, 0")
    A("  s_cbranch_scc1 L_cend")
    A("  s_mov_b32 s78, 1")
    A(f"  s_mov_b32 s96, {SPIN}")
    for k in range(6):
        A(f"  v_add_u32 v{10+k}, {BOFF:#x}, v{10+k}")
    A("  s_cmp_lg_u32 s89, 0")
    A("  s_cbranch_scc1 L_o")
    A("  s_branch L_ml")

    A("L_cons:")
    stamp(4)
    A(f"  s_mov_b32 s96, {SPIN}")
    A("  global_load_dword v44, v8, s[16:17] sc1")
    A("  s_and_b32 s93, s2, 7")
    A("  s_bfe_u32 s86, s2, 0x40003         ; slice")
    A("  s_sub_u32 s92, 31, s79")
    A("  s_sub_u32 s90, s79, 1")
    A("  s_lshl_b32 s91, s79, 3")
    A("  s_bitcmp1_b32 s2, 7")
    A("  s_cselect_b32 s92, s92, s90        ; producers - 1")
    A("  s_cselect_b32 s91, s91, 0")
    A("  s_addc_u32 s85, s77, 0")
    A("  s_add_u32 s91, s91, s93")
    A("  v_lshrrev_b32 v2, 3, v1")
    A("  v_and_b32 v9, 7, v1")
    A("  v_add_u32 v3, 8, v2")
    A("  v_add_u32 v5, 16, v2")
    A("  v_cmp_lt_u32 s[52:53], s92, v3")
    A("  v_cmp_lt_u32 s[54:55], s92, v5")
    A("  v_min_u32 v3, s92, v3")
    A("  v_min_u32 v5, s92, v5")
    A("  s_bfe_u32 s94, s86, 0x20001        ; h")
    A("  s_lshl_b32 s95, s94, 4")
    A("  s_lshl_b32 s97, s86, 7")
    A("  v_lshl_add_u32 v7, v9, 4, s97")
    for k, r in enumerate([2, 3, 5]):
        A(f"  v_lshl_add_u32 v{r}, v{r}, 3, s91")
        A(f"  v_mul_u32_u24 v{r}, {REC}, v{r}")
        A(f"  v_add_u32 v{10+k}, v{r}, v7")
        A(f"  v_add_u32 v{13+k}, s95, v{r}")
    A("  s_lshr_b32 s95, s94, 1")
    A("  s_lshl_b32 s95, s95, 13")
    A("  s_and_b32 s97, s86, 3")
    A("  s_lshl_b32 s97, s97, 7")
    A("  s_add_u32 s95, s95, s97")
    A("  s_lshl_b32 s97, s85, 9")
    A("  s_add_u32 s95, s95, s97")
    A("  s_and_b32 s97, s86, 8")
    A("  s_add_u32 s95, s95, s97")
    A("  v_lshrrev_b32 v7, 4, v1")
    A("  v_lshlrev_b32 v7, 1, v7")
    A("  v_lshl_add_u32 v9, v9, 4, v7")
    A("  v_add_u32 v9, s95, v9")
    A("  v_mul_u32_u24 v2, 40, v1")
    A("  v_add_u32 v3, s81, v4")
    A(f"  v_mov_b32 v5, {f32(-3e38)}")
    A(f"  s_mov_b32 s87, {f32(C)}")
    A("  s_mov_b32 s88, 0xffffff00")
    A("  s_mov_b32 s89, 0")
    A("L_non:")
    A("  s_waitcnt vmcnt(0)")
    A("  v_cmp_eq_u32 vcc, 0, v44")
    A("  s_cbranch_vccz L_non_ok")
    A("  s_sleep 8")
    A("  global_load_dword v44, v8, s[16:17] sc1")
    A("  s_sub_u32 s96, s96, 1")
    A("  s_cbranch_scc0 L_non")
    A("  s_waitcnt vmcnt(0)")
    A("L_non_ok:")
    stamp(5)
    for k in range(3):
        A(f"  global_load_dwordx4 v[{60+4*k}:{63+4*k}], v{10+k}, s[18:19] sc1")
    A("  v_bfe_u32 v45, v44, 8, 8")
    A("  v_bfe_u32 v46, v44, 16, 8")
    A("  v_lshrrev_b32 v47, 24, v44")
    A("  v_and_b32 v44, 0xff, v44")
    A("  s_mov_b64 exec, 1")
    A(f"  ds_write_b128 v8, v[44:47] offset:{LDS_TAG}")
    A("  s_mov_b64 exec, 0xff")
    A("L_lw:")
    A("  s_sleep 2")
    A(f"  ds_read_b32 v40, v8 offset:{LDS_CNT2}")
    A(f"  ds_read_b128 v[16:19], v4 offset:{LDS_MAX}")
    for k in range(5):
        A(f"  ds_read_b64 v[{20+2*k}:{21+2*k}], v2 offset:{LDS_L+8*k}")
    A("  s_waitcnt lgkmcnt(0)")
    A(f"  v_cmp_ne_u32 vcc, {W}, v40")
    A("  s_cbranch_vccnz L_lw")
    A("  v_max3_f32 v16, v16, v17, v18")
    A("  v_pk_add_f32 v[20:21], v[20:21], v[22:23]")
    A("  v_pk_add_f32 v[24:25], v[24:25], v[26:27]")
    A("  v_max_f32 v16, v16, v19")
    A("  v_pk_add_f32 v[20:21], v[20:21], v[28:29]")
    A("  v_mul_f32 v16, s87, v16")
    A("  v_pk_add_f32 v[20:21], v[20:21], v[24:25]")
    A("  v_and_or_b32 v16, v16, s88, v44")
    A("  v_add_f32 v17, v20, v21")
    A("  v_mov_b32 v18, v46")
    A("  v_mov_b32 v19, v47")
    A("  v_and_or_b32 v17, v17, s88, v45")
    if "noloc" not in xs:
        A("  global_store_dwordx4 v3, v[16:19], s[18:19] offset:2048")
    A(f"  v_add_u32 v3, {BOFF:#x}, v3")
    A("  global_store_dwordx4 v3, v[16:19], s[18:19] offset:2048 sc1")
    A("  s_mov_b64 exec, -1")
    A(f"  s_mov_b32 s96, {n1}")
    A("  s_mov_b32 s78, 0")
    A("  s_branch L_b2")

    A("L_general:")
    A(f"  ds_read_b128 v[{S}:{S+3}], v3 offset:{LDS_DESC+32}")
    A(f"  v_readfirstlane_b32 s74, v{D+3}")
    mkmask(NUG)
    A(f"  s_mul_i32 s90, s84, {NUG}")
    A("  v_add_u32 v8, s90, v1")
    A("  s_waitcnt vmcnt(0) lgkmcnt(0)")
    A(f"  v_add_u32 v8, v8, v{S+2}")
    A("  v_lshrrev_b32 v9, 2, v8")
    A(f"  v_cmp_lt_u32 vcc, v9, v{S}")
    A(f"  v_add_u32 v10, v9, v{S+1}")
    A("  s_nop 0")
    A("  v_cndmask_b32 v10, v10, v9, vcc")
    A("  v_and_b32 v10, 0x1ff, v10")
    A("  v_lshlrev_b32 v10, 2, v10")
    A(f"  ds_read_b32 v10, v10 offset:{LDS_TAB}")
    A(f"  v_cmp_lt_u32 vcc, v8, v{S+3}")
    A("  v_and_b32 v9, 3, v8")
    A("  v_lshl_add_u32 v9, v9, 14, s91")
    A(f"  v_mov_b32 v11, {KVBYTES}")
    A("  s_waitcnt lgkmcnt(0)")
    A("  v_min_u32 v10, 384, v10")
    A("  v_lshl_add_u32 v9, v10, 16, v9")
    A("  v_cndmask_b32 v9, v11, v9, vcc")
    A("  s_nop 0")
    for j in range(NUG):
        A(f"  v_readlane_b32 s{SO+j}, v9, {j}")
    A("  s_and_b32 s75, s74, 1")
    A("  s_bfe_u32 s76, s74, 0x10001")
    A("  s_mul_i32 s75, s75, 0x00ff00ff")
    A("  s_mul_i32 s76, s76, 0xff00ff00")
    A("  s_or_b32 s75, s75, s76")
    for j in range(NUG):
        r = X + 4 * j
        A(f"  buffer_load_dwordx4 v[{r}:{r+3}], v{VK}, s[20:23], s{SO+j} offen{NT}")
    A("  s_mov_b32 exec_lo, s75")
    A("  s_mov_b32 exec_hi, s75")
    for i in range(4):
        A(f"  v_mov_b32 v{Q+i}, 0")
    A("  s_mov_b64 exec, -1")
    A("  s_waitcnt vmcnt(0)")
    tg = lambda j: Y + 4 * (j % 4)
    for g in range(NUG // 4):
        js = list(range(4 * g, 4 * g + 4))
        qk_mfma(js, kreg, tg)
        A("  s_nop 4")
        qk_rest(js, tg)
    arrive()
    for j in range(NUG):
        r = X + 4 * j
        A(f"  buffer_load_dwordx4 v[{r}:{r+3}], v{VV}, s[24:27], s{SO+j} offen{NT}")
    waitmax("g")
    pcalc(NUG)
    pv(NUG, kreg)
    A("  s_branch L_tail")
    nv = 168 if stamps else 164
    A('.section .rodata,"a"')
    A(".p2align 6")
    A(f".amdhsa_kernel {NAME}_kernel")
    A(f"  .amdhsa_next_free_vgpr {nv}")
    A("  .amdhsa_next_free_sgpr 102")
    A(f"  .amdhsa_accum_offset {nv}")
    A("  .amdhsa_group_segment_fixed_size 0")
    A("  .amdhsa_kernarg_size 64")
    A("  .amdhsa_user_sgpr_count 2")
    A("  .amdhsa_user_sgpr_kernarg_segment_ptr 1")
    A("  .amdhsa_system_sgpr_workgroup_id_x 1")
    A(".end_amdhsa_kernel")
    return "\n".join(L) + "\n"

if __name__ == "__main__":
    import argparse
    ap = argparse.ArgumentParser()
    ap.add_argument("-o", required=True)
    ap.add_argument("--stamps", action="store_true")
    ap.add_argument("--pairs", default="1,0,2,4,3,5,7,6")
    ap.add_argument("--nas", default="16,13,13,13,16,16,15,13")
    ap.add_argument("--xs", default="")
    ap.add_argument("--skew", type=int, default=None)
    a = ap.parse_args()
    t = lambda s: tuple(int(x) for x in s.split(","))
    open(a.o, "w").write(gen(a.stamps, t(a.pairs), t(a.nas), tuple(a.xs.split(",")), skew=a.skew))
```

```python
import sys, math, struct

NAME = "standalone__paged_block_table_kv_radixattention__decode"
HDR = open("cdna_kernels/%s.s.ref" % NAME).read().split("; Override launch")[0]

def f32(x):
    return "0x%08x" % struct.unpack("<I", struct.pack("<f", x))[0]

W = 10
import os
NU = int(os.environ.get('NU', '9'))
NUG = 16
KVBYTES = 25165824
SLOT = 2048
REC = 2304
BOFF = 1 << 20
LDS_TAB = W * SLOT
LDS_DESC = LDS_TAB + 2048
LDS_TAG = LDS_DESC + 48
LDS_INIT = LDS_DESC + 64
LDS_MAX = LDS_INIT
LDS_CNT = LDS_INIT + 64
LDS_CNT2 = LDS_INIT + 68
LDS_L = LDS_INIT + 80
LDS_TOTAL = LDS_INIT + 512
SPIN = 1 << 15
TSPEC, N0SPEC, GAPSPEC = 303, 229, 27

DOC = """;
; Design
"""

def gen(stamps=False, pairs=(1, 0, 2, 4, 3, 5, 7, 6), nas=(16, 13, 13, 13, 16, 16, 15, 13), xs=(), n1=64, skew=None):
    L = []
    A = L.append
    C = (128 ** -0.5) * math.log2(math.e)
    NT = " nt"
    VST = 167
    assert sorted(pairs) == list(range(8))
    TU = 4 * TSPEC
    ca = [-(-TU // n) for n in nas]
    cb = [-(-TU // (32 - n)) for n in nas]
    for n in nas:
        for m in (n, 32 - n):
            assert -(-TU // m) <= W * NU and -(-2048 // m) <= W * NUG and m <= 24
    def tab64(v):
        x = sum(b << (8 * i) for i, b in enumerate(v))
        return x & 0xffffffff, x >> 32
    def stamp(k):
        if not stamps: return
        if "lite" in xs and k != 11: return
        A("  s_memrealtime s[98:99]")
        A("  s_waitcnt lgkmcnt(0)")
        A(f"  v_writelane_b32 v{VST}, s98, {k}")
    def stamp_store():
        if not stamps: return
        A("  s_lshl_b32 s98, s2, 4")
        A("  s_add_u32 s98, s98, s84")
        A("  s_lshl_b32 s98, s98, 7")
        A("  s_add_u32 s98, s98, 0x200000")
        A("  s_mov_b64 exec, -1")
        A("  v_lshl_add_u32 v14, v1, 2, s98")
        A("  s_mov_b32 exec_hi, 0")
        A(f"  global_store_dword v14, v{VST}, s[18:19]")
    VK, VV, VMSK = 4, 5, 6
    D = 8
    Q = 16
    VM, VL, VNEG, VAMAX, VH16, VSLOT, VG, VB = 20, 21, 22, 23, 24, 25, 26, 27
    O = 28
    S = 36
    Y = 52
    X = 84
    SO = 32
    A(HDR.rstrip())
    A(f"; @launch grid=(256,1,1) block=({64*(W+1)},1,1) lds={LDS_TOTAL}")
    A(DOC.rstrip())
    A('.amdgcn_target "amdgcn-amd-amdhsa--gfx950"')
    A(".text")
    A(f".globl {NAME}_kernel")
    A(".p2align 12")
    A(".p2align 8")
    A(f".type {NAME}_kernel,@function")
    A(f"{NAME}_kernel:")
    A("  s_load_dwordx16 s[4:19], s[0:1], 0")
    A("  s_getpc_b64 s[82:83]")
    A("  v_lshrrev_b32 v14, 6, v0")
    A("  v_and_b32 v1, 63, v0")
    A("  v_readfirstlane_b32 s84, v14")
    A("  s_cmp_ge_u32 s2, 256")
    A("  s_cbranch_scc1 L_end")
    if stamps:
        A(f"  v_mov_b32 v{VST}, 0")
        A("  s_memrealtime s[98:99]")
    lo, hi = tab64([nas[x] | (pairs[x] << 5) for x in range(8)])
    A("  s_and_b32 s90, s2, 7               ; group x")
    A("  s_lshl_b32 s90, s90, 3")
    A(f"  s_mov_b32 s92, {lo:#x}")
    A(f"  s_mov_b32 s93, {hi:#x}")
    A("  s_lshr_b64 s[92:93], s[92:93], s90")
    A("  s_and_b32 s79, s92, 31")
    A("  s_bfe_u32 s77, s92, 0x30005")
    A("  s_lshl_b32 s77, s77, 1")
    A("  s_lshr_b32 s91, s2, 3              ; j")
    A("  s_sub_u32 s86, s91, s79")
    A("  s_sub_u32 s80, 32, s79")
    A("  s_cmp_ge_u32 s91, s79")
    A("  s_cselect_b32 s86, s86, s91")
    A("  s_cselect_b32 s80, s80, s79        ; #splits")
    (al, ah), (bl, bh) = tab64(ca), tab64(cb)
    A(f"  s_mov_b32 s92, {al:#x}")
    A(f"  s_mov_b32 s93, {ah:#x}")
    A(f"  s_cselect_b32 s92, {bl:#x}, s92")
    A(f"  s_cselect_b32 s93, {bh:#x}, s93")
    A("  s_addc_u32 s85, s77, 0             ; head")
    A("  s_lshl_b32 s91, s85, 8             ; head*256")
    A(f"  s_mul_i32 s81, s2, {REC}")
    A(f"  s_cmp_eq_u32 s84, {W}")
    A("  s_cbranch_scc1 L_helper")
    A("  s_lshr_b64 s[92:93], s[92:93], s90")
    A("  s_and_b32 s93, s92, 0xff")
    A("  s_mul_i32 s92, s93, s86            ; lo")
    if "upw" in xs:
        A(f"  s_add_u32 s76, s93, {W-1}")
        A(f"  s_mul_i32 s76, s76, {65536//W+1}")
        A("  s_lshr_b32 s76, s76, 16")
    A("  s_add_u32 s93, s93, s92")
    A(f"  s_min_u32 s93, s93, {TU}           ; hi")
    if "upw" in xs:
        A("  s_mul_i32 s75, s84, s76")
        A("  s_add_u32 s94, s75, s92")
        A("  s_add_u32 s95, s94, s76")
        A("  s_min_u32 s93, s93, s95")
    else:
        A(f"  s_mul_i32 s94, s84, {NU}")
        A("  s_add_u32 s94, s94, s92")
    A("  v_add_u32 v8, s94, v1")
    A(f"  v_add_u32 v9, {4*GAPSPEC}, v8")
    A(f"  v_cmp_gt_u32 vcc, {4*N0SPEC}, v8")
    A(f"  v_lshrrev_b32 v{VG}, 4, v1           ; g")
    A("  v_and_b32 v3, 15, v1               ; n")
    A("  v_cndmask_b32 v9, v9, v8, vcc")
    A("  v_cmp_gt_u32 vcc, s93, v8")
    A("  v_lshl_add_u32 v9, v9, 14, s91")
    A(f"  v_mov_b32 v10, {KVBYTES}")
    A("  v_cndmask_b32 v9, v10, v9, vcc")
    A("  v_and_b32 v14, 3, v1               ; u")
    A("  v_lshrrev_b32 v15, 2, v3           ; t = h")
    for j in range(NU):
        A(f"  v_readlane_b32 s{SO+j}, v9, {j}")
    A(f"  v_lshlrev_b32 v{VK}, 6, v{VG}")
    A(f"  v_lshl_add_u32 v{VK}, v14, 4, v{VK}      ; 64g + 16u")
    A(f"  v_lshrrev_b32 v{VB}, 3, v3")
    A("  v_and_b32 v12, 1, v15")
    A(f"  v_lshl_add_u32 v12, v12, 8, v{VK}")
    A(f"  v_lshl_add_u32 v12, v{VB}, 13, v12")
    A("  s_lshl_b32 s90, s85, 9")
    A("  v_add_u32 v12, s90, v12            ; q offset")
    A(f"  v_lshl_add_u32 v{VK}, v15, 12, v{VK}     ; voffK = t*4096 + 64g + 16u")
    A(f"  s_mov_b32 s22, {KVBYTES}")
    A("  s_mov_b32 s23, 0x20000")
    A("  s_waitcnt lgkmcnt(0)")
    if stamps:
        A(f"  v_writelane_b32 v{VST}, s98, 0")
    stamp(1)
    A("  s_mov_b64 s[20:21], s[6:7]")
    A(f"  global_load_dwordx4 v[{Q}:{Q+3}], v12, s[4:5]")
    for j in range(NU):
        r = X + 4 * j
        A(f"  buffer_load_dwordx4 v[{r}:{r+3}], v{VK}, s[20:23], s{SO+j} offen{NT}")
    A("  s_branch L_comp2")

    A("L_helper:")
    A("  s_setprio 3")
    A("  s_memrealtime s[60:61]")
    if skew is not None:
        A("  s_memrealtime s[62:63]")
    A("  v_lshlrev_b32 v2, 7, v1")
    A("  s_mov_b32 exec_hi, 0xff")
    A("  global_load_dword v3, v2, s[82:83]")
    A("  s_mov_b64 exec, -1")
    A("  v_lshlrev_b32 v4, 4, v1            ; lane*16")
    A("  v_lshlrev_b32 v6, 2, v1            ; lane*4")
    A(f"  v_mov_b32 v7, {f32(-1e28)}")
    A("  v_cmp_gt_u32 vcc, 16, v1")
    A("  v_mov_b32 v8, 0")
    A("  v_cvt_f32_u32 v10, s80")
    A("  v_cndmask_b32 v7, 0, v7, vcc")
    A("  v_rcp_f32 v10, v10")
    A(f"  ds_write_b32 v6, v7 offset:{LDS_INIT}")
    A("  s_mov_b32 s69, 0")
    A("  s_waitcnt lgkmcnt(0)")
    if stamps:
        A(f"  v_writelane_b32 v{VST}, s98, 0")
    stamp(1)
    A("  global_load_dwordx4 v[12:15], v4, s[10:11]")
    A("  global_load_dwordx4 v[16:19], v4, s[10:11] offset:1024")
    A("  s_load_dwordx2 s[32:33], s[12:13], 0")
    A("  s_cmp_lg_u32 s2, 1")
    A("  s_cbranch_scc1 L_nononce")
    if skew is not None:
        A("  v_mov_b32 v9, s60")
        A("  s_mov_b64 exec, 1")
        A("  global_store_dword v8, v9, s[16:17] offset:128 sc1")
        A("  s_mov_b64 exec, -1")
        A("  s_waitcnt vmcnt(0)")
    A("  s_lshr_b64 s[60:61], s[60:61], 2")
    A("  s_mul_i32 s60, s60, 0x9e3779b1")
    A("  s_bitset1_b32 s60, 0")
    A("  s_bfe_u32 s61, s60, 0x10008")
    A("  s_xor_b32 s60, s60, s61")
    A("  v_mov_b32 v9, s60")
    A("  s_mov_b64 exec, 1")
    A("  global_store_dword v8, v9, s[16:17] sc1")
    A("  s_mov_b64 exec, -1")
    A("  s_waitcnt vmcnt(1)")
    A("L_nononce:")
    A("  s_waitcnt lgkmcnt(0)")
    for b in range(2):
        s = 32 + b
        A(f"  s_cmp_lt_i32 s{s}, 1")
        A(f"  s_cselect_b32 s34, {1<<b}, 0")
        A(f"  s_cselect_b32 s{s}, 4096, s{s}")
        A(f"  s_or_b32 s69, s69, s34")
        A(f"  s_min_i32 s{s}, s{s}, 4096")
        A(f"  s_add_u32 s{38+b}, s{s}, 15")
        A(f"  s_lshr_b32 s{38+b}, s{38+b}, 4             ; n{b}")
    A("  s_cmp_eq_u32 s2, 1")
    A("  s_cbranch_scc1 L_btok")
    A("  s_waitcnt vmcnt(0)")
    A("L_btok:")
    stamp(2)
    A(f"  ds_write_b128 v4, v[12:15] offset:{LDS_TAB}")
    A(f"  ds_write_b128 v4, v[16:19] offset:{LDS_TAB+1024}")
    A("  v_cmp_ne_u64 s[34:35], v[12:13], v[16:17]")
    A("  v_cmp_ne_u64 s[36:37], v[14:15], v[18:19]")
    A("  s_nop 1")
    A("  s_or_b64 s[34:35], s[34:35], s[36:37]")
    A("  s_ff1_i32_b64 s34, s[34:35]")
    A("  s_lshl_b32 s34, s34, 2")
    A("  s_min_u32 s34, s34, s38")
    A("  s_min_u32 s34, s34, s39")
    A("  s_add_u32 s35, s38, s39")
    A("  s_sub_u32 s35, s35, s34")
    A(f"  s_cmp_lg_u32 s35, {TSPEC}")
    A("  s_cselect_b32 s41, 4, 0")
    A("  s_or_b32 s69, s69, s41")
    A("  s_lshl_b32 s35, s35, 2             ; units")
    A("  s_add_u32 s36, s35, s80")
    A("  v_cvt_f32_u32 v11, s36")
    A("  v_add_f32 v11, -0.5, v11")
    A("  v_mul_f32 v11, v11, v10")
    A("  v_cvt_u32_f32 v11, v11")
    A("  s_sub_u32 s41, s34, s38")
    A("  v_readfirstlane_b32 s37, v11")
    A("  s_add_u32 s41, s41, 256            ; P - n0 + 256")
    A("  s_mul_i32 s36, s37, s86            ; lo")
    A("  s_add_u32 s37, s37, s36")
    A("  s_min_u32 s37, s37, s35            ; hi")
    A("  s_lshr_b32 s40, s36, 2")
    A("  v_add_u32 v12, s40, v1")
    A("  v_cmp_gt_u32 vcc, s38, v12")
    A("  v_add_u32 v13, s41, v12")
    A(f"  v_add_u32 v14, {GAPSPEC}, v12")
    A("  v_cndmask_b32 v13, v13, v12, vcc")
    A(f"  v_cmp_gt_u32 vcc, {N0SPEC}, v12")
    A("  v_and_b32 v13, 0x1ff, v13")
    A("  v_lshlrev_b32 v13, 2, v13")
    A("  v_cndmask_b32 v14, v14, v12, vcc")
    A("  v_lshlrev_b32 v12, 2, v12")
    A("  s_waitcnt lgkmcnt(0)")
    A(f"  ds_read_b32 v13, v13 offset:{LDS_TAB}")
    A("  v_cmp_gt_u32 s[42:43], s37, v12")
    A("  s_lshl_b32 s44, s36, 2")
    A("  s_sub_u32 s44, 3, s44")
    A("  s_lshl_b32 s45, s37, 2")
    A("  s_min_u32 s46, s32, s45")
    A("  s_add_u32 s46, s46, s44")
    A("  s_lshl_b32 s47, s34, 4")
    A("  s_min_u32 s48, s47, s33")
    A("  s_min_u32 s48, s48, s45")
    A("  s_add_u32 s48, s48, s44")
    A("  s_lshl_b32 s49, s38, 4")
    A("  s_sub_u32 s50, s49, s47")
    A("  s_add_u32 s50, s50, s33")
    A("  s_min_u32 s50, s50, s45")
    A("  s_add_u32 s50, s50, s44")
    A("  s_add_u32 s49, s49, s44")
    A("  v_mov_b32 v30, 0")
    for lane, sr in [(0, "s46"), (4, "s48"), (5, "s49"), (6, "s50"), (8, "s38"), (9, "s41"), (10, "s36"), (11, "s37")]:
        A(f"  v_writelane_b32 v30, {sr}, {lane}")
    A("  s_waitcnt lgkmcnt(0)")
    A("  v_cmp_ne_u32 vcc, v13, v14")
    A("  s_and_b64 vcc, vcc, s[42:43]")
    A("  s_cselect_b32 s41, 4, 0")
    A("  s_or_b32 s69, s69, s41")
    A("  v_writelane_b32 v30, s69, 3")
    A("  v_writelane_b32 v30, s69, 7")
    A("  s_mov_b64 exec, 0xfff")
    A(f"  ds_write_b32 v6, v30 offset:{LDS_DESC}")
    A("  s_mov_b64 exec, -1")
    A("  s_waitcnt lgkmcnt(0)")
    stamp(3)
    A("  s_barrier                          ; #0")
    A("  s_branch L_cons")

    A("L_comp2:")
    A(f"  v_lshlrev_b32 v{VV}, 12, v{VG}")
    A(f"  v_lshl_add_u32 v{VV}, v3, 4, v{VV}       ; voffV = g*4096 + 16n")
    A("  s_mov_b64 s[24:25], s[8:9]")
    A(f"  s_mov_b32 s26, {KVBYTES}")
    A("  s_mov_b32 s27, 0x20000")
    A(f"  v_lshlrev_b32 v{VB}, 4, v{VB}")
    A("  v_and_b32 v13, 1, v14")
    A("  v_lshlrev_b32 v13, 4, v13")
    A("  v_mov_b32 v2, 0xffff")
    A("  v_lshlrev_b32 v13, v13, v2")
    A("  v_cmp_gt_u32 vcc, 2, v14")
    A(f"  v_lshlrev_b32 v{VH16}, 4, v15")
    A(f"  v_lshl_add_u32 v{VAMAX}, v{VG}, 2, v{VH16}")
    A("  v_cndmask_b32 v12, 0, v13, vcc")
    A("  v_xor_b32 v13, v12, v13")
    A(f"  v_mov_b32 v{VM}, {f32(-1e28)}")
    A(f"  v_mov_b32 v{VNEG}, {f32(-1e30)}")
    A("  s_lshl_b32 s90, s84, 11")
    A(f"  v_lshl_add_u32 v{VSLOT}, v1, 4, s90")
    A(f"  s_mov_b32 s87, {f32(C)}          ; log2(e)/sqrt(128)")
    A("  s_mov_b32 s88, 0xffffff00")
    A("  v_mov_b32 v2, 1")
    A("  v_mov_b32 v3, 0")
    stamp(2)
    A("  s_barrier")
    A(f"  ds_read_b128 v[{D}:{D+3}], v{VB} offset:{LDS_DESC}")
    stamp(3)

    def mkmask(nu, var=False):
        if var:
            A(f"  v_lshl_add_u32 v14, s75, 2, v{VG}")
        else:
            A(f"  s_mul_i32 s90, s84, {4*nu}")
            A(f"  v_add_u32 v14, s90, v{VG}")
        for k in range(3):
            A(f"  v_sub_u32 v{D+k}, v{D+k}, v14")
        for k in range(3):
            A(f"  v_ashrrev_i32 v{D+k}, 2, v{D+k}")
        for k in range(3):
            A(f"  v_med3_i32 v{D+k}, v{D+k}, 0, " + ("s76" if var else "31"))
        for k in range(3):
            A(f"  v_bfm_b32 v{D+k}, v{D+k}, 0")
        A(f"  v_bfi_b32 v{VMSK}, v{D+1}, 0, v{D+2}")
        A(f"  v_or_b32 v{VMSK}, v{VMSK}, v{D}")
    def qk_mfma(js, kreg, treg):
        for j in js:
            A(f"  v_mfma_f32_16x16x32_bf16 v[{treg(j)}:{treg(j)+3}], v[{kreg(j)}:{kreg(j)+3}], v[{Q}:{Q+3}], 0")
    def qk_rest(js, treg):
        assert len(js) >= 3
        for k in range(4):
            for j in js:
                q = f"quad_perm:[{k},{k},{k},{k}] row_mask:0xf bank_mask:0xf"
                if k == 0:
                    A(f"  v_mov_b32_dpp v{S+j}, v{treg(j)} {q}")
                else:
                    A(f"  v_add_f32_dpp v{S+j}, v{treg(j)+k}, v{S+j} {q}")
        for j in js:
            A(f"  v_bfe_i32 v{treg(j)}, v{VMSK}, {j}, 1")
        for j in js:
            A(f"  v_bfi_b32 v{S+j}, v{treg(j)}, v{S+j}, v{VNEG}")
        js = list(js)
        while js:
            if len(js) >= 2:
                A(f"  v_max3_f32 v{VM}, v{S+js[0]}, v{S+js[1]}, v{VM}"); js = js[2:]
            else:
                A(f"  v_max_f32 v{VM}, v{S+js[0]}, v{VM}"); js = js[1:]
    def arrive():
        A("  s_mov_b32 exec_lo, 0x11111111")
        A("  s_mov_b32 exec_hi, 0x11111111")
        A(f"  ds_max_f32 v{VAMAX}, v{VM} offset:{LDS_MAX}")
        A("  s_mov_b64 exec, 1")
        A(f"  ds_add_u32 v3, v2 offset:{LDS_CNT}")
        A("  s_mov_b64 exec, -1")
    def waitmax(tag):
        A(f"L_wm{tag}:")
        A(f"  ds_read_b32 v{Y+4}, v3 offset:{LDS_CNT}")
        A(f"  ds_read_b128 v[{Y}:{Y+3}], v{VH16} offset:{LDS_MAX}")
        A("  s_waitcnt lgkmcnt(0)")
        A(f"  v_cmp_ne_u32 vcc, {W}, v{Y+4}")
        A(f"  s_cbranch_vccnz L_wm{tag}")
        A(f"  v_max3_f32 v{VM}, v{Y}, v{Y+1}, v{Y+2}")
        A(f"  v_max_f32 v{VM}, v{VM}, v{Y+3}")
        A(f"  v_mul_f32 v{VM}, s87, v{VM}")
        A(f"  v_and_b32 v{VM}, s88, v{VM}")
    def pcalc(nu):
        for j in range(nu):
            A(f"  v_fma_f32 v{S+j}, v{S+j}, s87, -v{VM}")
        for j in range(nu):
            A(f"  v_exp_f32 v{S+j}, v{S+j}")
        A(f"  v_add_f32 v{VL}, v{S}, v{S+1}")
        for j in range(nu):
            if j >= 2:
                A(f"  v_add_f32 v{VL}, v{VL}, v{S+j}")
            A(f"  v_cvt_pk_bf16_f32 v{S+j}, v{S+j}, v{S+j}")
        A(f"  v_mov_b32 v14, v{VL}")
        A("  v_mul_u32_u24 v15, 40, v15")
        A("  s_lshl_b32 s90, s84, 2")
        A(f"  v_permlane16_swap_b32 v{VL}, v14")
        A(f"  v_add_f32 v{VL}, v{VL}, v14")
        A(f"  v_mov_b32 v14, v{VL}")
        A("  v_add_u32 v15, s90, v15")
        A("  s_nop 0")
        A(f"  v_permlane32_swap_b32 v{VL}, v14")
        A(f"  v_add_f32 v{VL}, v{VL}, v14")
        A("  s_mov_b64 exec, 0x1111")
        A(f"  ds_write_b32 v15, v{VL} offset:{LDS_L}")
        A("  s_mov_b64 exec, 1")
        A(f"  ds_add_u32 v3, v2 offset:{LDS_CNT2}")
        A("  s_mov_b64 exec, -1")
        for j in range(nu):
            A(f"  v_and_b32 v{Y+2*j}, v{S+j}, v12")
            A(f"  v_and_b32 v{Y+2*j+1}, v{S+j}, v13")
        A("  s_lshl_b32 s90, s84, 10")
        A("  v_lshl_add_u32 v14, v1, 4, s90")
        A("  v_add_u32 v15, s81, v14")
        A(f"  v_add_u32 v12, {BOFF:#x}, v15")
    def pv(nu, vreg):
        for j in range(nu):
            c0 = "0" if j == 0 else f"v[{O}:{O+3}]"
            c1 = "0" if j == 0 else f"v[{O+4}:{O+7}]"
            A(f"  s_waitcnt vmcnt({nu-1-j})")
            A(f"  v_mfma_f32_16x16x16_bf16 v[{O}:{O+3}], v[{Y+2*j}:{Y+2*j+1}], v[{vreg(j)}:{vreg(j)+1}], {c0}")
            A(f"  v_mfma_f32_16x16x16_bf16 v[{O+4}:{O+7}], v[{Y+2*j}:{Y+2*j+1}], v[{vreg(j)+2}:{vreg(j)+3}], {c1}")

    kreg = lambda j: X + 4 * j
    G0, G1, G2 = list(range(NU - 6)), list(range(NU - 6, NU - 3)), list(range(NU - 3, NU))
    treg = lambda j: Y + 4 * (j if j < NU - 3 else j - (NU - 3))
    A("  s_waitcnt vmcnt(6)")
    qk_mfma(G0, kreg, treg)
    A("  s_waitcnt lgkmcnt(0)")
    A(f"  v_cmp_ne_u32 vcc, 0, v{D+3}")
    A("  s_cbranch_vccnz L_general")
    mkmask(NU, 'upw' in xs)
    A("  s_waitcnt vmcnt(3)")
    qk_mfma(G1, kreg, treg)
    qk_rest(G0, treg)
    A("  s_waitcnt vmcnt(0)")
    stamp(4)
    qk_mfma(G2, kreg, treg)
    qk_rest(G1, treg)
    qk_rest(G2, treg)
    arrive()
    stamp(5)
    for j in range(NU):
        r = X + 4 * NU + 4 * j
        A(f"  buffer_load_dwordx4 v[{r}:{r+3}], v{VV}, s[24:27], s{SO+j} offen{NT}")
    stamp(6)
    waitmax("f")
    stamp(7)
    pcalc(NU)
    stamp(8)
    pv(NU, lambda j: X + 4 * NU + 4 * j)
    A("L_tail:")
    stamp(9)
    A("  s_cmp_gt_u32 s84, 1")
    A("  s_nop 5")
    A(f"  ds_write_b128 v{VSLOT}, v[{O}:{O+3}]")
    A(f"  ds_write_b128 v{VSLOT}, v[{O+4}:{O+7}] offset:1024")
    A("  s_waitcnt lgkmcnt(0)")
    A("  s_barrier                          ; #2")
    A("  s_cbranch_scc1 L_fin")
    for w in range(W):
        A(f"  ds_read_b128 v[{X+4*w}:{X+4*w+3}], v14 offset:{w*SLOT}")
    A(f"  ds_read_b128 v[{D}:{D+3}], v3 offset:{LDS_TAG}")
    for w in range(1, W):
        A(f"  s_waitcnt lgkmcnt({W-w})")
        A(f"  v_pk_add_f32 v[{X}:{X+1}], v[{X}:{X+1}], v[{X+4*w}:{X+4*w+1}]")
        A(f"  v_pk_add_f32 v[{X+2}:{X+3}], v[{X+2}:{X+3}], v[{X+4*w+2}:{X+4*w+3}]")
    A("  s_waitcnt lgkmcnt(0)")
    for k in range(4):
        A(f"  v_and_or_b32 v{X+k}, v{X+k}, s88, v{D+k}")
    if "noloc" not in xs:
        A(f"  global_store_dwordx4 v15, v[{X}:{X+3}], s[18:19]")
    A(f"  global_store_dwordx4 v12, v[{X}:{X+3}], s[18:19] sc1")
    A("L_fin:")
    stamp(10)
    if "lite" not in xs:
        stamp_store()
    A("L_end:")
    A("  s_endpgm")

    A("L_b2:")
    stamp(6)
    A("  s_barrier                          ; #2")
    stamp(8)
    A("L_ml:")
    for k in range(3):
        A(f"  global_load_dwordx4 v[{16+4*k}:{19+4*k}], v{13+k}, s[18:19] offset:2048 sc1")
    A("L_o:")
    for k in range(3):
        A(f"  global_load_dwordx4 v[{28+4*k}:{31+4*k}], v{10+k}, s[18:19] sc1")
    A("  s_cmp_lg_u32 s89, 0")
    A("  s_cbranch_scc1 L_chk")
    A("  s_waitcnt vmcnt(3)")
    def check(base):
        for k in range(3):
            for i in range(4):
                A(f"  v_xor_b32 v{base+4*k+i}, v{base+4*k+i}, v{44+i}")
        A(f"  v_or3_b32 v40, v{base}, v{base+1}, v{base+2}")
        A(f"  v_or3_b32 v41, v{base+3}, v{base+4}, v{base+5}")
        A(f"  v_or3_b32 v42, v{base+6}, v{base+7}, v{base+8}")
        A(f"  v_or3_b32 v40, v{base+9}, v{base+10}, v40")
        A(f"  v_or3_b32 v41, v{base+11}, v41, v42")
        A("  v_or_b32 v40, v40, v41")
        A("  v_and_b32 v40, 0xff, v40")
        A("  v_cmp_ne_u32 vcc, 0, v40")
    check(16)
    A("  s_cbranch_vccnz L_retry_ml")
    A("  v_cndmask_b32 v20, v20, v5, s[52:53]")
    A("  v_cndmask_b32 v24, v24, v5, s[54:55]")
    A("  v_max3_f32 v40, v16, v20, v24")
    def xred(op):
        A("  s_nop 1")
        A(f"  {op}_dpp v40, v40, v40 row_ror:8 row_mask:0xf bank_mask:0xf")
        A("  v_mov_b32 v41, v40")
        A("  s_nop 1")
        A("  v_permlane16_swap_b32 v40, v41")
        A(f"  {op} v40, v40, v41")
        A("  v_mov_b32 v41, v40")
        A("  s_nop 1")
        A("  v_permlane32_swap_b32 v40, v41")
        A(f"  {op} v40, v40, v41")
    xred("v_max_f32")
    for k in range(3):
        A(f"  v_sub_f32 v{16+4*k}, v{16+4*k}, v40")
    for k in range(3):
        A(f"  v_exp_f32 v{16+4*k}, v{16+4*k}")
    A("  v_mul_f32 v40, v16, v17")
    A("  v_fmac_f32 v40, v20, v21")
    A("  v_fmac_f32 v40, v24, v25")
    xred("v_add_f32")
    A("  v_rcp_f32 v40, v40")
    A("  s_mov_b32 s89, 1")
    for k in range(3):
        A(f"  v_mul_f32 v{16+4*k}, v{16+4*k}, v40")
    stamp(9)
    A("L_chk:")
    A("  s_sub_u32 s96, s96, 1")
    A("  s_waitcnt vmcnt(0)")
    A("  s_cbranch_scc1 L_switch")
    check(28)
    A("  s_cbranch_vccnz L_o")
    stamp(10)
    for i in range(4):
        A(f"  v_mul_f32 v{28+i}, v16, v{28+i}")
    for k in (1, 2):
        for i in range(4):
            A(f"  v_fmac_f32 v{28+i}, v{16+4*k}, v{28+4*k+i}")
    A("  s_nop 0")
    A("  v_permlane16_swap_b32 v28, v29")
    A("  v_permlane16_swap_b32 v30, v31")
    A("  v_add_f32 v28, v28, v29")
    A("  v_add_f32 v30, v30, v31")
    A("  s_nop 1")
    A("  v_permlane32_swap_b32 v28, v30")
    A("  v_add_f32 v28, v28, v30")
    A("  s_nop 1")
    A("  v_add_f32_dpp v28, v28, v28 row_ror:8 row_mask:0xf bank_mask:0xf")
    A("  s_mov_b32 exec_lo, 0x00ff00ff")
    A("  s_mov_b32 exec_hi, 0x00ff00ff")
    A("  v_cvt_pk_bf16_f32 v28, v28, v28")
    A("  global_store_short v9, v28, s[14:15]")
    A("L_cend:")
    if skew is not None:
        A("  s_mov_b64 exec, -1")
        A("  global_load_dword v44, v8, s[16:17] offset:128 sc1")
        A("  s_memrealtime s[66:67]")
        A("  s_waitcnt vmcnt(0) lgkmcnt(0)")
        A("  v_readfirstlane_b32 s70, v44")
        A(f"  s_cmp_lg_u32 s2, {skew % 100}")
        A("  s_cbranch_scc1 L_noamp")
        A("  s_sub_u32 s68, s62, s70" if skew < 100 else "  s_sub_u32 s68, s66, s70")
        A("  s_add_u32 s68, s68, 200" if skew < 100 else "  s_nop 0")
        A("  s_mul_i32 s68, s68, 20")
        A("  s_min_u32 s68, s68, 30000")
        A("L_amp:")
        A("  s_sleep 4")
        A("  s_memrealtime s[70:71]")
        A("  s_waitcnt lgkmcnt(0)")
        A("  s_sub_u32 s70, s70, s66")
        A("  s_cmp_lt_u32 s70, s68")
        A("  s_cbranch_scc1 L_amp")
        A("L_noamp:")
    if stamps:
        A("  s_waitcnt vmcnt(0)")
        stamp(11)
        A("  s_sub_u32 s96, %d, s96" % n1)
        A(f"  v_writelane_b32 v{VST}, s96, 29")
        stamp_store()
    A("  s_endpgm")
    A("L_retry_ml:")
    A("  s_sub_u32 s96, s96, 1")
    A("  s_waitcnt vmcnt(0)")
    A("  s_cbranch_scc0 L_ml")
    A("L_switch:                            ; plain copies did not arrive: use the write-through copies")
    A("  s_cmp_lg_u32 s78, 0")
    A("  s_cbranch_scc1 L_cend")
    A("  s_mov_b32 s78, 1")
    A(f"  s_mov_b32 s96, {SPIN}")
    for k in range(6):
        A(f"  v_add_u32 v{10+k}, {BOFF:#x}, v{10+k}")
    A("  s_cmp_lg_u32 s89, 0")
    A("  s_cbranch_scc1 L_o")
    A("  s_branch L_ml")

    A("L_cons:")
    stamp(4)
    A(f"  s_mov_b32 s96, {SPIN}")
    A("  global_load_dword v44, v8, s[16:17] sc1")
    A("  s_and_b32 s93, s2, 7")
    A("  s_bfe_u32 s86, s2, 0x40003         ; slice")
    A("  s_sub_u32 s92, 31, s79")
    A("  s_sub_u32 s90, s79, 1")
    A("  s_lshl_b32 s91, s79, 3")
    A("  s_bitcmp1_b32 s2, 7")
    A("  s_cselect_b32 s92, s92, s90        ; producers - 1")
    A("  s_cselect_b32 s91, s91, 0")
    A("  s_addc_u32 s85, s77, 0")
    A("  s_add_u32 s91, s91, s93")
    A("  v_lshrrev_b32 v2, 3, v1")
    A("  v_and_b32 v9, 7, v1")
    A("  v_add_u32 v3, 8, v2")
    A("  v_add_u32 v5, 16, v2")
    A("  v_cmp_lt_u32 s[52:53], s92, v3")
    A("  v_cmp_lt_u32 s[54:55], s92, v5")
    A("  v_min_u32 v3, s92, v3")
    A("  v_min_u32 v5, s92, v5")
    A("  s_bfe_u32 s94, s86, 0x20001        ; h")
    A("  s_lshl_b32 s95, s94, 4")
    A("  s_lshl_b32 s97, s86, 7")
    A("  v_lshl_add_u32 v7, v9, 4, s97")
    for k, r in enumerate([2, 3, 5]):
        A(f"  v_lshl_add_u32 v{r}, v{r}, 3, s91")
        A(f"  v_mul_u32_u24 v{r}, {REC}, v{r}")
        A(f"  v_add_u32 v{10+k}, v{r}, v7")
        A(f"  v_add_u32 v{13+k}, s95, v{r}")
    A("  s_lshr_b32 s95, s94, 1")
    A("  s_lshl_b32 s95, s95, 13")
    A("  s_and_b32 s97, s86, 3")
    A("  s_lshl_b32 s97, s97, 7")
    A("  s_add_u32 s95, s95, s97")
    A("  s_lshl_b32 s97, s85, 9")
    A("  s_add_u32 s95, s95, s97")
    A("  s_and_b32 s97, s86, 8")
    A("  s_add_u32 s95, s95, s97")
    A("  v_lshrrev_b32 v7, 4, v1")
    A("  v_lshlrev_b32 v7, 1, v7")
    A("  v_lshl_add_u32 v9, v9, 4, v7")
    A("  v_add_u32 v9, s95, v9")
    A("  v_mul_u32_u24 v2, 40, v1")
    A("  v_add_u32 v3, s81, v4")
    A(f"  v_mov_b32 v5, {f32(-3e38)}")
    A(f"  s_mov_b32 s87, {f32(C)}")
    A("  s_mov_b32 s88, 0xffffff00")
    A("  s_mov_b32 s89, 0")
    A("L_non:")
    A("  s_waitcnt vmcnt(0)")
    A("  v_cmp_eq_u32 vcc, 0, v44")
    A("  s_cbranch_vccz L_non_ok")
    A("  s_sleep 8")
    A("  global_load_dword v44, v8, s[16:17] sc1")
    A("  s_sub_u32 s96, s96, 1")
    A("  s_cbranch_scc0 L_non")
    A("  s_waitcnt vmcnt(0)")
    A("L_non_ok:")
    stamp(5)
    for k in range(3):
        A(f"  global_load_dwordx4 v[{60+4*k}:{63+4*k}], v{10+k}, s[18:19] sc1")
    A("  v_bfe_u32 v45, v44, 8, 8")
    A("  v_bfe_u32 v46, v44, 16, 8")
    A("  v_lshrrev_b32 v47, 24, v44")
    A("  v_and_b32 v44, 0xff, v44")
    A("  s_mov_b64 exec, 1")
    if "outwarm" in xs:
        A("  global_load_ushort v72, v9, s[14:15]")
    A(f"  ds_write_b128 v8, v[44:47] offset:{LDS_TAG}")
    A("  s_mov_b64 exec, 0xff")
    A("L_lw:")
    A("  s_sleep 2")
    A(f"  ds_read_b32 v40, v8 offset:{LDS_CNT2}")
    A(f"  ds_read_b128 v[16:19], v4 offset:{LDS_MAX}")
    for k in range(5):
        A(f"  ds_read_b64 v[{20+2*k}:{21+2*k}], v2 offset:{LDS_L+8*k}")
    A("  s_waitcnt lgkmcnt(0)")
    A(f"  v_cmp_ne_u32 vcc, {W}, v40")
    A("  s_cbranch_vccnz L_lw")
    A("  v_max3_f32 v16, v16, v17, v18")
    A("  v_pk_add_f32 v[20:21], v[20:21], v[22:23]")
    A("  v_pk_add_f32 v[24:25], v[24:25], v[26:27]")
    A("  v_max_f32 v16, v16, v19")
    A("  v_pk_add_f32 v[20:21], v[20:21], v[28:29]")
    A("  v_mul_f32 v16, s87, v16")
    A("  v_pk_add_f32 v[20:21], v[20:21], v[24:25]")
    A("  v_and_or_b32 v16, v16, s88, v44")
    A("  v_add_f32 v17, v20, v21")
    A("  v_mov_b32 v18, v46")
    A("  v_mov_b32 v19, v47")
    A("  v_and_or_b32 v17, v17, s88, v45")
    if "noloc" not in xs:
        A("  global_store_dwordx4 v3, v[16:19], s[18:19] offset:2048")
    A(f"  v_add_u32 v3, {BOFF:#x}, v3")
    A("  global_store_dwordx4 v3, v[16:19], s[18:19] offset:2048 sc1")
    A("  s_mov_b64 exec, -1")
    A(f"  s_mov_b32 s96, {n1}")
    A("  s_mov_b32 s78, 0")
    A("  s_branch L_b2")

    A("L_general:")
    A(f"  ds_read_b128 v[{S}:{S+3}], v3 offset:{LDS_DESC+32}")
    A(f"  v_readfirstlane_b32 s74, v{D+3}")
    mkmask(NUG)
    A(f"  s_mul_i32 s90, s84, {NUG}")
    A("  v_add_u32 v8, s90, v1")
    A("  s_waitcnt vmcnt(0) lgkmcnt(0)")
    A(f"  v_add_u32 v8, v8, v{S+2}")
    A("  v_lshrrev_b32 v9, 2, v8")
    A(f"  v_cmp_lt_u32 vcc, v9, v{S}")
    A(f"  v_add_u32 v10, v9, v{S+1}")
    A("  s_nop 0")
    A("  v_cndmask_b32 v10, v10, v9, vcc")
    A("  v_and_b32 v10, 0x1ff, v10")
    A("  v_lshlrev_b32 v10, 2, v10")
    A(f"  ds_read_b32 v10, v10 offset:{LDS_TAB}")
    A(f"  v_cmp_lt_u32 vcc, v8, v{S+3}")
    A("  v_and_b32 v9, 3, v8")
    A("  v_lshl_add_u32 v9, v9, 14, s91")
    A(f"  v_mov_b32 v11, {KVBYTES}")
    A("  s_waitcnt lgkmcnt(0)")
    A("  v_min_u32 v10, 384, v10")
    A("  v_lshl_add_u32 v9, v10, 16, v9")
    A("  v_cndmask_b32 v9, v11, v9, vcc")
    A("  s_nop 0")
    for j in range(NUG):
        A(f"  v_readlane_b32 s{SO+j}, v9, {j}")
    A("  s_and_b32 s75, s74, 1")
    A("  s_bfe_u32 s76, s74, 0x10001")
    A("  s_mul_i32 s75, s75, 0x00ff00ff")
    A("  s_mul_i32 s76, s76, 0xff00ff00")
    A("  s_or_b32 s75, s75, s76")
    for j in range(NUG):
        r = X + 4 * j
        A(f"  buffer_load_dwordx4 v[{r}:{r+3}], v{VK}, s[20:23], s{SO+j} offen{NT}")
    A("  s_mov_b32 exec_lo, s75")
    A("  s_mov_b32 exec_hi, s75")
    for i in range(4):
        A(f"  v_mov_b32 v{Q+i}, 0")
    A("  s_mov_b64 exec, -1")
    A("  s_waitcnt vmcnt(0)")
    tg = lambda j: Y + 4 * (j % 4)
    for g in range(NUG // 4):
        js = list(range(4 * g, 4 * g + 4))
        qk_mfma(js, kreg, tg)
        A("  s_nop 4")
        qk_rest(js, tg)
    arrive()
    for j in range(NUG):
        r = X + 4 * j
        A(f"  buffer_load_dwordx4 v[{r}:{r+3}], v{VV}, s[24:27], s{SO+j} offen{NT}")
    waitmax("g")
    pcalc(NUG)
    pv(NUG, kreg)
    A("  s_branch L_tail")
    nv = 168 if stamps else X + max(8 * NU, 4 * NUG)
    A('.section .rodata,"a"')
    A(".p2align 6")
    A(f".amdhsa_kernel {NAME}_kernel")
    A(f"  .amdhsa_next_free_vgpr {nv}")
    A("  .amdhsa_next_free_sgpr 102")
    A(f"  .amdhsa_accum_offset {nv}")
    A("  .amdhsa_group_segment_fixed_size 0")
    A("  .amdhsa_kernarg_size 64")
    A("  .amdhsa_user_sgpr_count 2")
    A("  .amdhsa_user_sgpr_kernarg_segment_ptr 1")
    A("  .amdhsa_system_sgpr_workgroup_id_x 1")
    A(".end_amdhsa_kernel")
    return "\n".join(L) + "\n"

if __name__ == "__main__":
    import argparse
    ap = argparse.ArgumentParser()
    ap.add_argument("-o", required=True)
    ap.add_argument("--stamps", action="store_true")
    ap.add_argument("--pairs", default="1,0,2,3,4,5,6,7")
    ap.add_argument("--nas", default="16,14,14,16,14,16,14,15")
    ap.add_argument("--xs", default="")
    ap.add_argument("--skew", type=int, default=None)
    a = ap.parse_args()
    t = lambda s: tuple(int(x) for x in s.split(","))
    open(a.o, "w").write(gen(a.stamps, t(a.pairs), t(a.nas), tuple(a.xs.split(",")), skew=a.skew))
```

```python
import sys, math, struct

NAME = "standalone__paged_block_table_kv_radixattention__decode"
HDR = open("cdna_kernels/%s.s.ref" % NAME).read().split("; Override launch")[0]

def f32(x):
    return "0x%08x" % struct.unpack("<I", struct.pack("<f", x))[0]

W = 10
NU = 9
NUG = 16
KVBYTES = 25165824
SLOT = 2048
LDS_TAB = W * SLOT
LDS_DESC = LDS_TAB + 2048
LDS_TAG = LDS_DESC + 48
LDS_INIT = LDS_DESC + 64
LDS_MAX = LDS_INIT
LDS_CNT = LDS_INIT + 64
LDS_CNT2 = LDS_INIT + 68
LDS_L = LDS_INIT + 80
LDS_TOTAL = LDS_INIT + 512
SPIN = 1 << 15

def gen(stamps=False, nt=True, pollflags="sc1", codepf=True, pubflags="sc1", cnts=(14, 18, 16, 16),
        outflags="", xs=(), rec=2304, psleep=0, locflags="", n1=64):
    L = []
    A = L.append
    C = (128 ** -0.5) * math.log2(math.e)
    NT = " nt" if nt else ""
    VST = 167
    BOFF = 1 << 20
    assert cnts[0] + cnts[1] == 32 and cnts[2] + cnts[3] == 32 and -(-1212 // min(cnts)) <= W * NU and -(-2048 // min(cnts)) <= W * NUG and max(cnts) <= 24
    magic = [(1 << 24) // c + 1 for c in cnts]
    def stamp(k):
        if not stamps: return
        A("  s_memrealtime s[98:99]")
        A("  s_waitcnt lgkmcnt(0)")
        A(f"  v_writelane_b32 v{VST}, s98, {k}")
    def stamp_store():
        if not stamps: return
        A("  s_getreg_b32 s98, hwreg(HW_REG_XCC_ID)")
        A("  s_getreg_b32 s99, hwreg(HW_REG_HW_ID)")
        A(f"  v_writelane_b32 v{VST}, s98, 30")
        A(f"  v_writelane_b32 v{VST}, s99, 31")
        A("  s_lshl_b32 s98, s2, 4")
        A("  s_add_u32 s98, s98, s84")
        A("  s_lshl_b32 s98, s98, 7")
        A("  s_add_u32 s98, s98, 0x200000")
        A("  s_mov_b64 exec, -1")
        A("  v_lshl_add_u32 v14, v1, 2, s98")
        A("  s_mov_b32 exec_hi, 0")
        A(f"  global_store_dword v14, v{VST}, s[18:19]")
    VK, VV = 4, 5
    VMSK = 6
    D = 8
    Q = 16
    VM, VL, VNEG, VAMAX, VH16, VSLOT, VG, VB = 20, 21, 22, 23, 24, 25, 26, 27
    O = 28
    S = 36
    Y = 52
    X = 88
    SO = 32
    A(HDR.rstrip())
    A(f"; @launch grid=(256,1,1) block=({64*(W+1)},1,1) lds={LDS_TOTAL}")
    A('.amdgcn_target "amdgcn-amd-amdhsa--gfx950"')
    A(".text")
    A(f".globl {NAME}_kernel")
    A(".p2align 12")
    A(".p2align 8")
    A(f".type {NAME}_kernel,@function")
    A(f"{NAME}_kernel:")
    if "ampw" in xs:
        A("  s_memrealtime s[62:63]")
    A("  s_load_dwordx16 s[4:19], s[0:1], 0")
    A("  s_getpc_b64 s[82:83]")
    if "pf0" in xs:
        A("  v_lshlrev_b32 v2, 7, v0")
        A("  v_cmpx_gt_u32 vcc, 40, v0")
        A("  s_cbranch_execz L_nopf")
        A("  global_load_dword v166, v2, s[82:83]")
        A("L_nopf:")
        A("  s_mov_b64 exec, -1")
        A("  s_nop 0")
    A("  v_lshrrev_b32 v14, 6, v0")
    A("  v_and_b32 v1, 63, v0")
    A("  v_readfirstlane_b32 s84, v14")
    A("  s_cmp_ge_u32 s2, 256")
    A("  s_cbranch_scc1 L_end")
    if stamps:
        A(f"  v_mov_b32 v{VST}, 0")
        A("  s_memrealtime s[98:99]")
    A("  s_and_b32 s85, s2, 7               ; group x")
    A("  s_lshr_b32 s90, s2, 3              ; j")
    A("  s_bitcmp0_b32 s2, 0")
    A(f"  s_cselect_b32 s79, {cnts[0]}, {cnts[2]}         ; nA")
    A(f"  s_mov_b32 s80, {magic[0]}")
    A(f"  s_cselect_b32 s80, s80, {magic[2]}")
    A(f"  s_mov_b32 s91, {magic[1]}")
    A(f"  s_cselect_b32 s91, s91, {magic[3]}")
    A("  s_lshl_b32 s85, s85, 1")
    A("  s_sub_u32 s86, s90, s79")
    A("  s_cmp_ge_u32 s90, s79")
    A("  s_cselect_b32 s86, s86, s90        ; idx")
    A("  s_cselect_b32 s80, s91, s80        ; magic")
    A("  s_addc_u32 s85, s85, 0             ; head")
    A("  s_lshl_b32 s91, s85, 8             ; head*256")
    A(f"  s_mul_i32 s81, s2, {rec}")
    A(f"  s_cmp_eq_u32 s84, {W}")
    A("  s_cbranch_scc1 L_helper")
    A(f"  s_mul_i32 s92, s86, {1212*256}")
    A(f"  s_add_u32 s93, s92, {1212*256}")
    A("  s_mul_hi_u32 s92, s92, s80         ; lo")
    A("  s_mul_hi_u32 s93, s93, s80         ; hi")
    A(f"  s_mul_i32 s94, s84, {NU}")
    A("  s_add_u32 s94, s94, s92")
    A("  v_add_u32 v8, s94, v1              ; unit")
    A("  v_add_u32 v9, 108, v8")
    A("  v_cmp_gt_u32 vcc, 916, v8")
    A(f"  v_lshrrev_b32 v{VG}, 4, v1           ; g")
    A("  v_and_b32 v3, 15, v1               ; n")
    A("  v_cndmask_b32 v9, v9, v8, vcc")
    A("  v_cmp_gt_u32 vcc, s93, v8")
    A("  v_lshl_add_u32 v9, v9, 14, s91")
    A(f"  v_mov_b32 v10, {KVBYTES}")
    A("  v_cndmask_b32 v9, v10, v9, vcc")
    A("  v_and_b32 v14, 3, v1               ; u")
    A("  v_lshrrev_b32 v15, 2, v3           ; t = h")
    for j in range(NU):
        A(f"  v_readlane_b32 s{SO+j}, v9, {j}")
    A(f"  v_lshlrev_b32 v{VK}, 6, v{VG}")
    A(f"  v_lshl_add_u32 v{VK}, v14, 4, v{VK}      ; 64g + 16u")
    A(f"  v_lshrrev_b32 v{VB}, 3, v3           ; bsel")
    A("  v_and_b32 v12, 1, v15              ; hh")
    A(f"  v_lshl_add_u32 v12, v12, 8, v{VK}")
    A(f"  v_lshl_add_u32 v12, v{VB}, 13, v12")
    A("  s_lshl_b32 s90, s85, 9")
    A("  v_add_u32 v12, s90, v12            ; q offset")
    A(f"  v_lshl_add_u32 v{VK}, v15, 12, v{VK}     ; voffK = t*4096 + 64g + 16u")
    A(f"  s_mov_b32 s22, {KVBYTES}")
    A("  s_mov_b32 s23, 0x20000")
    if "ampw" in xs and "w_pre" in xs:
        A("  s_memrealtime s[72:73]")
    A("  s_waitcnt lgkmcnt(0)")
    if "ampw" in xs and "w_ka" in xs:
        A("  s_memrealtime s[72:73]")
    if stamps:
        A(f"  v_writelane_b32 v{VST}, s98, 0")
    stamp(1)
    A("  s_mov_b64 s[20:21], s[6:7]")
    A(f"  global_load_dwordx4 v[{Q}:{Q+3}], v12, s[4:5]")
    for j in range(NU):
        r = X + 4 * j
        A(f"  buffer_load_dwordx4 v[{r}:{r+3}], v{VK}, s[20:23], s{SO+j} offen{NT}")
    A("  s_branch L_comp2")

    A("L_helper:")
    A("  s_setprio 3")
    A("  s_memrealtime s[60:61]")
    if "amp" in xs or "ampc" in xs or "ampk" in xs:
        A("  s_memrealtime s[62:63]")
        A("  s_memtime s[64:65]")
    if codepf and "pf128" in xs:
        A("  v_lshlrev_b32 v2, 7, v1")
        A("  s_mov_b32 exec_hi, 0xff")
        A("  global_load_dword v3, v2, s[82:83]")
        A("  s_mov_b64 exec, -1")
    elif codepf:
        A("  v_lshlrev_b32 v2, 6, v1")
        A("  global_load_dword v3, v2, s[82:83]")
    A("  v_lshlrev_b32 v4, 4, v1            ; lane*16")
    A("  v_lshlrev_b32 v6, 2, v1            ; lane*4")
    A(f"  v_mov_b32 v7, {f32(-1e28)}")
    A("  v_cmp_gt_u32 vcc, 16, v1")
    A("  v_mov_b32 v8, 0")
    A("  s_mov_b32 s69, 0")
    A("  v_cndmask_b32 v7, 0, v7, vcc")
    A(f"  ds_write_b32 v6, v7 offset:{LDS_INIT}")
    A("  s_waitcnt lgkmcnt(0)")
    if stamps:
        A(f"  v_writelane_b32 v{VST}, s98, 0")
    stamp(1)
    if "ampk" in xs and "p_ka" in xs:
        A("  s_memrealtime s[72:73]")
    A("  global_load_dwordx4 v[12:15], v4, s[10:11]")
    A("  global_load_dwordx4 v[16:19], v4, s[10:11] offset:1024")
    A("  s_load_dwordx2 s[32:33], s[12:13], 0")
    A("  s_cmp_lg_u32 s2, 0")
    A("  s_cbranch_scc1 L_nononce")
    A("  s_lshr_b64 s[60:61], s[60:61], 1")
    A("  s_bitset1_b32 s60, 0")
    A("  s_bfe_u32 s61, s60, 0x10008")
    A("  s_xor_b32 s60, s60, s61")
    A("  v_mov_b32 v9, s60")
    A("  s_mov_b64 exec, 1")
    A("  global_store_dword v8, v9, s[16:17] sc1")
    A("  s_mov_b64 exec, -1")
    A("  s_waitcnt vmcnt(1)")
    A("L_nononce:")
    A("  s_waitcnt lgkmcnt(0)")
    for b in range(2):
        s = 32 + b
        A(f"  s_cmp_lt_i32 s{s}, 1")
        A(f"  s_cselect_b32 s34, {1<<b}, 0")
        A(f"  s_cselect_b32 s{s}, 4096, s{s}")
        A(f"  s_or_b32 s69, s69, s34")
        A(f"  s_min_i32 s{s}, s{s}, 4096")
        A(f"  s_add_u32 s{38+b}, s{s}, 15")
        A(f"  s_lshr_b32 s{38+b}, s{38+b}, 4     ; n{b}")
    A("  s_cmp_eq_u32 s2, 0")
    A("  s_cbranch_scc1 L_btok")
    A("  s_waitcnt vmcnt(0)")
    A("L_btok:")
    if "ampk" in xs and "p_bt" in xs:
        A("  s_memrealtime s[72:73]")
        A("  s_waitcnt lgkmcnt(0)")
    stamp(2)
    A(f"  ds_write_b128 v4, v[12:15] offset:{LDS_TAB}")
    A(f"  ds_write_b128 v4, v[16:19] offset:{LDS_TAB+1024}")
    A("  v_cmp_ne_u64 s[34:35], v[12:13], v[16:17]")
    A("  v_cmp_ne_u64 s[36:37], v[14:15], v[18:19]")
    A("  s_nop 1")
    A("  s_or_b64 s[34:35], s[34:35], s[36:37]")
    A("  s_ff1_i32_b64 s34, s[34:35]")
    A("  s_lshl_b32 s34, s34, 2")
    A("  s_min_u32 s34, s34, s38")
    A("  s_min_u32 s34, s34, s39            ; P")
    A("  s_add_u32 s35, s38, s39")
    A("  s_sub_u32 s35, s35, s34            ; T")
    A("  s_cmp_lg_u32 s35, 303")
    A("  s_cselect_b32 s41, 4, 0")
    A("  s_or_b32 s69, s69, s41")
    A("  s_lshl_b32 s35, s35, 10            ; 4T*256")
    A("  s_mul_i32 s36, s35, s86")
    A("  s_add_u32 s37, s36, s35")
    A("  s_mul_hi_u32 s36, s36, s80         ; lo")
    A("  s_mul_hi_u32 s37, s37, s80         ; hi")
    A("  s_sub_u32 s41, s34, s38")
    A("  s_add_u32 s41, s41, 256            ; P - n0 + 256")
    A("  s_lshr_b32 s40, s36, 2")
    A("  v_add_u32 v12, s40, v1             ; i")
    A("  v_cmp_gt_u32 vcc, s38, v12         ; i < n0")
    A("  v_add_u32 v13, s41, v12")
    A("  v_add_u32 v14, 27, v12")
    A("  v_cndmask_b32 v13, v13, v12, vcc   ; e")
    A("  v_cmp_gt_u32 vcc, 229, v12")
    A("  v_and_b32 v13, 0x1ff, v13")
    A("  v_lshlrev_b32 v13, 2, v13")
    A("  v_cndmask_b32 v14, v14, v12, vcc")
    A("  v_lshlrev_b32 v12, 2, v12")
    A("  s_waitcnt lgkmcnt(0)")
    A(f"  ds_read_b32 v13, v13 offset:{LDS_TAB}")
    A("  v_cmp_gt_u32 s[42:43], s37, v12    ; 4i < hi")
    A("  s_lshl_b32 s44, s36, 2")
    A("  s_sub_u32 s44, 3, s44              ; adj")
    A("  s_lshl_b32 s45, s37, 2             ; 4hi")
    A("  s_min_u32 s46, s32, s45")
    A("  s_add_u32 s46, s46, s44            ; a0'")
    A("  s_lshl_b32 s47, s34, 4             ; 16P")
    A("  s_min_u32 s48, s47, s33")
    A("  s_min_u32 s48, s48, s45")
    A("  s_add_u32 s48, s48, s44            ; a1'")
    A("  s_lshl_b32 s49, s38, 4             ; 16n0")
    A("  s_sub_u32 s50, s49, s47")
    A("  s_add_u32 s50, s50, s33")
    A("  s_min_u32 s50, s50, s45")
    A("  s_add_u32 s50, s50, s44            ; c1'")
    A("  s_add_u32 s49, s49, s44            ; b1'")
    A("  v_mov_b32 v30, 0")
    for lane, sr in [(0, "s46"), (4, "s48"), (5, "s49"), (6, "s50"), (8, "s38"), (9, "s41"), (10, "s36"), (11, "s37")]:
        A(f"  v_writelane_b32 v30, {sr}, {lane}")
    A("  s_waitcnt lgkmcnt(0)")
    A("  v_cmp_ne_u32 vcc, v13, v14")
    A("  s_and_b64 vcc, vcc, s[42:43]")
    A("  s_cselect_b32 s41, 4, 0")
    A("  s_or_b32 s69, s69, s41")
    A("  v_writelane_b32 v30, s69, 3")
    A("  v_writelane_b32 v30, s69, 7")
    A("  s_mov_b64 exec, 0xfff")
    A(f"  ds_write_b32 v6, v30 offset:{LDS_DESC}")
    A("  s_mov_b64 exec, -1")
    A("  s_waitcnt lgkmcnt(0)")
    stamp(3)
    A("  s_barrier                          ; #0")
    A("  s_branch L_cons")

    A("L_comp2:")
    A(f"  v_lshlrev_b32 v{VV}, 12, v{VG}")
    A(f"  v_lshl_add_u32 v{VV}, v3, 4, v{VV}       ; voffV = g*4096 + 16n")
    A("  s_mov_b64 s[24:25], s[8:9]")
    A(f"  s_mov_b32 s26, {KVBYTES}")
    A("  s_mov_b32 s27, 0x20000")
    A(f"  v_lshlrev_b32 v{VB}, 4, v{VB}")
    A("  v_and_b32 v13, 1, v14")
    A("  v_lshlrev_b32 v13, 4, v13")
    A("  v_mov_b32 v2, 0xffff")
    A("  v_lshlrev_b32 v13, v13, v2         ; 0xffff << 16*(u&1)")
    A("  v_cmp_gt_u32 vcc, 2, v14")
    A(f"  v_lshlrev_b32 v{VH16}, 4, v15        ; h*16")
    A(f"  v_lshl_add_u32 v{VAMAX}, v{VG}, 2, v{VH16}   ; h*16+g*4")
    A("  v_cndmask_b32 v12, 0, v13, vcc     ; mask0")
    A("  v_xor_b32 v13, v12, v13            ; mask1")
    A(f"  v_mov_b32 v{VM}, {f32(-1e28)}")
    A(f"  v_mov_b32 v{VNEG}, {f32(-1e30)}")
    A(f"  v_mov_b32 v{VL}, 0")
    for i in range(8):
        A(f"  v_mov_b32 v{O+i}, 0")
    A("  s_lshl_b32 s90, s84, 11")
    A(f"  v_lshl_add_u32 v{VSLOT}, v1, 4, s90")
    A(f"  s_mov_b32 s87, {f32(C)}")
    A("  s_mov_b32 s88, 0xffffff00")
    A("  v_mov_b32 v2, 1")
    A("  v_mov_b32 v3, 0")
    stamp(2)
    A("  s_barrier                          ; #0")
    A(f"  ds_read_b128 v[{D}:{D+3}], v{VB} offset:{LDS_DESC}")
    stamp(3)

    def mkmask(nu):
        A(f"  s_mul_i32 s90, s84, {4*nu}")
        A(f"  v_add_u32 v14, s90, v{VG}            ; B'")
        for k in range(3):
            A(f"  v_sub_u32 v{D+k}, v{D+k}, v14")
        for k in range(3):
            A(f"  v_ashrrev_i32 v{D+k}, 2, v{D+k}")
        for k in range(3):
            A(f"  v_med3_i32 v{D+k}, v{D+k}, 0, 31")
        for k in range(3):
            A(f"  v_bfm_b32 v{D+k}, v{D+k}, 0")
        A(f"  v_bfi_b32 v{VMSK}, v{D+1}, 0, v{D+2}     ; c & ~b")
        A(f"  v_or_b32 v{VMSK}, v{VMSK}, v{D}")
    def qk_mfma(js, kreg, treg):
        for j in js:
            A(f"  v_mfma_f32_16x16x32_bf16 v[{treg(j)}:{treg(j)+3}], v[{kreg(j)}:{kreg(j)+3}], v[{Q}:{Q+3}], 0")
    def qk_rest(js, treg):
        assert len(js) >= 3
        for k in range(4):
            for j in js:
                q = f"quad_perm:[{k},{k},{k},{k}] row_mask:0xf bank_mask:0xf"
                if k == 0:
                    A(f"  v_mov_b32_dpp v{S+j}, v{treg(j)} {q}")
                else:
                    A(f"  v_add_f32_dpp v{S+j}, v{treg(j)+k}, v{S+j} {q}")
        for j in js:
            A(f"  v_bfe_i32 v{treg(j)}, v{VMSK}, {j}, 1")
        for j in js:
            A(f"  v_bfi_b32 v{S+j}, v{treg(j)}, v{S+j}, v{VNEG}")
        js = list(js)
        while js:
            if len(js) >= 2:
                A(f"  v_max3_f32 v{VM}, v{S+js[0]}, v{S+js[1]}, v{VM}"); js = js[2:]
            else:
                A(f"  v_max_f32 v{VM}, v{S+js[0]}, v{VM}"); js = js[1:]
    def arrive():
        A("  s_mov_b32 exec_lo, 0x11111111")
        A("  s_mov_b32 exec_hi, 0x11111111")
        A(f"  ds_max_f32 v{VAMAX}, v{VM} offset:{LDS_MAX}")
        A("  s_mov_b64 exec, 1")
        A(f"  ds_add_u32 v3, v2 offset:{LDS_CNT}")
        A("  s_mov_b64 exec, -1")
    def waitmax(tag):
        A(f"L_wm{tag}:")
        A(f"  ds_read_b32 v{Y+4}, v3 offset:{LDS_CNT}")
        A(f"  ds_read_b128 v[{Y}:{Y+3}], v{VH16} offset:{LDS_MAX}")
        A("  s_waitcnt lgkmcnt(0)")
        A(f"  v_cmp_ne_u32 vcc, {W}, v{Y+4}")
        A(f"  s_cbranch_vccnz L_wm{tag}")
        A(f"  v_max3_f32 v{VM}, v{Y}, v{Y+1}, v{Y+2}")
        A(f"  v_max_f32 v{VM}, v{VM}, v{Y+3}")
        A(f"  v_mul_f32 v{VM}, s87, v{VM}          ; M*c")
        A(f"  v_and_b32 v{VM}, s88, v{VM}")
    def pcalc(nu):
        for j in range(nu):
            A(f"  v_fma_f32 v{S+j}, v{S+j}, s87, -v{VM}")
        for j in range(nu):
            A(f"  v_exp_f32 v{S+j}, v{S+j}")
        for j in range(nu):
            A(f"  v_add_f32 v{VL}, v{VL}, v{S+j}")
            A(f"  v_cvt_pk_bf16_f32 v{S+j}, v{S+j}, v{S+j}")
        A(f"  v_mov_b32 v14, v{VL}")
        A("  v_mul_u32_u24 v15, 40, v15         ; h*40")
        A("  s_lshl_b32 s90, s84, 2")
        A(f"  v_permlane16_swap_b32 v{VL}, v14")
        A(f"  v_add_f32 v{VL}, v{VL}, v14")
        A(f"  v_mov_b32 v14, v{VL}")
        A("  v_add_u32 v15, s90, v15")
        A("  s_nop 0")
        A(f"  v_permlane32_swap_b32 v{VL}, v14")
        A(f"  v_add_f32 v{VL}, v{VL}, v14")
        A("  s_mov_b64 exec, 0x1111")
        A(f"  ds_write_b32 v15, v{VL} offset:{LDS_L}")
        A("  s_mov_b64 exec, 1")
        A(f"  ds_add_u32 v3, v2 offset:{LDS_CNT2}")
        A("  s_mov_b64 exec, -1")
        for j in range(nu):
            A(f"  v_and_b32 v{Y+2*j}, v{S+j}, v12")
            A(f"  v_and_b32 v{Y+2*j+1}, v{S+j}, v13")
        A("  s_lshl_b32 s90, s84, 10")
        A("  v_lshl_add_u32 v14, v1, 4, s90")
        A("  v_add_u32 v15, s81, v14")
        A(f"  v_add_u32 v12, {BOFF}, v15")
    def pv(nu, vreg):
        for j in range(nu):
            A(f"  s_waitcnt vmcnt({nu-1-j})")
            A(f"  v_mfma_f32_16x16x16_bf16 v[{O}:{O+3}], v[{Y+2*j}:{Y+2*j+1}], v[{vreg(j)}:{vreg(j)+1}], v[{O}:{O+3}]")
            A(f"  v_mfma_f32_16x16x16_bf16 v[{O+4}:{O+7}], v[{Y+2*j}:{Y+2*j+1}], v[{vreg(j)+2}:{vreg(j)+3}], v[{O+4}:{O+7}]")

    kreg = lambda j: X + 4 * j
    treg = lambda j: Y + 4 * j
    A("  s_waitcnt vmcnt(6)")
    qk_mfma([0, 1, 2], kreg, treg)
    A("  s_waitcnt lgkmcnt(0)")
    A(f"  v_cmp_ne_u32 vcc, 0, v{D+3}")
    A("  s_cbranch_vccnz L_general")
    mkmask(NU)
    A("  s_waitcnt vmcnt(3)")
    qk_mfma([3, 4, 5], kreg, treg)
    qk_rest([0, 1, 2], treg)
    A("  s_waitcnt vmcnt(0)")
    stamp(4)
    qk_mfma([6, 7, 8], kreg, treg)
    qk_rest([3, 4, 5], treg)
    qk_rest([6, 7, 8], treg)
    arrive()
    stamp(5)
    for j in range(NU):
        r = X + 36 + 4 * j
        A(f"  buffer_load_dwordx4 v[{r}:{r+3}], v{VV}, s[24:27], s{SO+j} offen{NT}")
    stamp(6)
    waitmax("f")
    stamp(7)
    pcalc(NU)
    stamp(8)
    pv(NU, lambda j: X + 36 + 4 * j)
    A("L_tail:")
    stamp(9)
    A("  s_cmp_gt_u32 s84, 1")
    A("  s_nop 5")
    A(f"  ds_write_b128 v{VSLOT}, v[{O}:{O+3}]")
    A(f"  ds_write_b128 v{VSLOT}, v[{O+4}:{O+7}] offset:1024")
    A("  s_waitcnt lgkmcnt(0)")
    A("  s_barrier                          ; #2")
    A("  s_cbranch_scc1 L_fin")
    for w in range(W):
        A(f"  ds_read_b128 v[{X+4*w}:{X+4*w+3}], v14 offset:{w*SLOT}")
    A(f"  ds_read_b128 v[{D}:{D+3}], v3 offset:{LDS_TAG}")
    for w in range(1, W):
        A(f"  s_waitcnt lgkmcnt({W-w})")
        A(f"  v_pk_add_f32 v[{X}:{X+1}], v[{X}:{X+1}], v[{X+4*w}:{X+4*w+1}]")
        A(f"  v_pk_add_f32 v[{X+2}:{X+3}], v[{X+2}:{X+3}], v[{X+4*w+2}:{X+4*w+3}]")
    A("  s_waitcnt lgkmcnt(0)")
    for k in range(4):
        A(f"  v_and_or_b32 v{X+k}, v{X+k}, s88, v{D+k}")
    if "noloc" not in xs:
        A(f"  global_store_dwordx4 v15, v[{X}:{X+3}], s[18:19] {locflags}")
    if "nopub" not in xs:
        A(f"  global_store_dwordx4 v12, v[{X}:{X+3}], s[18:19] {pubflags}")
    if "dup" in xs:
        A("  v_add_u32 v15, 0x400000, v15")
        A("  v_add_u32 v12, 0x400000, v12")
        A(f"  global_store_dwordx4 v15, v[{X}:{X+3}], s[18:19] {locflags}")
        if "nopub" not in xs:
            A(f"  global_store_dwordx4 v12, v[{X}:{X+3}], s[18:19] {pubflags}")
    A("L_fin:")
    if "ampw" in xs:
        A("  s_memrealtime s[66:67]")
        A("  s_waitcnt lgkmcnt(0)")
        A("  s_sub_u32 s68, s72, s62")
        A("  s_mul_i32 s68, s68, 50")
        A("L_ampw:")
        A("  s_sleep 4")
        A("  s_memrealtime s[70:71]")
        A("  s_waitcnt lgkmcnt(0)")
        A("  s_sub_u32 s70, s70, s66")
        A("  s_cmp_lt_u32 s70, s68")
        A("  s_cbranch_scc1 L_ampw")
    stamp(10)
    stamp_store()
    A("L_end:")
    A("  s_endpgm")

    A("L_non:")
    A("  s_waitcnt vmcnt(0)")
    A("  v_cmp_eq_u32 vcc, 0, v44")
    A("  s_cbranch_vccz L_non_ok")
    A("  s_sleep 8")
    A("  global_load_dword v44, v8, s[16:17] sc1")
    A("  s_sub_u32 s96, s96, 1")
    A("  s_cbranch_scc0 L_non")
    A("  s_waitcnt vmcnt(0)")
    A("L_non_ok:")
    stamp(5)
    if "tlbw" in xs:
        A("  s_mov_b64 exec, 1")
        A("  global_load_dword v72, v3, s[18:19] offset:2048")
        A("  global_load_ushort v73, v9, s[14:15]")
        A("  s_mov_b64 exec, -1")
    if "prepoll" in xs:
        for k in range(3):
            A(f"  global_load_dwordx4 v[{60+4*k}:{63+4*k}], v{10+k}, s[18:19] {pollflags}")
    if "dup" in xs:
        for k in range(2):
            A(f"  v_add_u32 v{74+k}, 0x400000, v{10+k}")
            A(f"  global_load_dwordx4 v[{76+4*k}:{79+4*k}], v{74+k}, s[18:19] {pollflags}")
    if "prepollml" in xs:
        for k in range(3):
            A(f"  global_load_dwordx4 v[{48+4*k}:{51+4*k}], v{13+k}, s[18:19] offset:2048 {pollflags}")
    A("  v_bfe_u32 v45, v44, 8, 8")
    A("  v_bfe_u32 v46, v44, 16, 8")
    A("  v_lshrrev_b32 v47, 24, v44")
    A("  v_and_b32 v44, 0xff, v44")
    A("  s_mov_b64 exec, 1")
    A(f"  ds_write_b128 v8, v[44:47] offset:{LDS_TAG}")
    A("  s_mov_b64 exec, 0xff" if "mlfull" in xs else "  s_mov_b64 exec, 0xf")
    A("L_lw:")
    A("  s_sleep 2")
    A(f"  ds_read_b32 v40, v8 offset:{LDS_CNT2}")
    A(f"  ds_read_b128 v[16:19], v4 offset:{LDS_MAX}")
    for k in range(5):
        A(f"  ds_read_b64 v[{20+2*k}:{21+2*k}], v2 offset:{LDS_L+8*k}")
    A("  s_waitcnt lgkmcnt(0)")
    A(f"  v_cmp_ne_u32 vcc, {W}, v40")
    A("  s_cbranch_vccnz L_lw")
    A("  v_max3_f32 v16, v16, v17, v18")
    A("  v_pk_add_f32 v[20:21], v[20:21], v[22:23]")
    A("  v_pk_add_f32 v[24:25], v[24:25], v[26:27]")
    A("  v_max_f32 v16, v16, v19")
    A("  v_pk_add_f32 v[20:21], v[20:21], v[28:29]")
    A("  v_mul_f32 v16, s87, v16")
    A("  v_pk_add_f32 v[20:21], v[20:21], v[24:25]")
    A("  v_and_or_b32 v16, v16, s88, v44")
    A("  v_add_f32 v17, v20, v21")
    A("  v_mov_b32 v18, v46")
    A("  v_mov_b32 v19, v47")
    A("  v_and_or_b32 v17, v17, s88, v45")
    if "noloc" not in xs and "nomlloc" not in xs:
        A(f"  global_store_dwordx4 v3, v[16:19], s[18:19] offset:2048 {locflags}")
    A(f"  v_add_u32 v3, {BOFF}, v3")
    if "nomlpub" not in xs:
        A(f"  global_store_dwordx4 v3, v[16:19], s[18:19] offset:2048 {pubflags}")
    A("  s_mov_b64 exec, -1")
    A(f"  s_mov_b32 s96, {n1}")
    A("  s_mov_b32 s78, 0")
    if "latepre" in xs:
        for k in range(3):
            A(f"  global_load_dwordx4 v[{60+4*k}:{63+4*k}], v{10+k}, s[18:19] {pollflags}")
        for k in range(3):
            A(f"  global_load_dwordx4 v[{48+4*k}:{51+4*k}], v{13+k}, s[18:19] offset:2048 {pollflags}")
    if "mlearly" in xs:
        A("  s_nop 0")
        for k in range(3):
            A(f"  global_load_dwordx4 v[{16+4*k}:{19+4*k}], v{13+k}, s[18:19] offset:2048 {pollflags}")
    stamp(6)
    A("  s_barrier                          ; #2")
    stamp(8)
    if "ampk" in xs and "p_b2" in xs:
        A("  s_memrealtime s[72:73]")
    if "nocons" in xs:
        A("  s_branch L_cend")
    if "outonly" in xs:
        A("  s_branch L_o_done")
    if "mlearly" in xs:
        A("  s_branch L_o")
    A("L_ml:")
    for k in range(3):
        A(f"  global_load_dwordx4 v[{16+4*k}:{19+4*k}], v{13+k}, s[18:19] offset:2048 {pollflags}")
    A("L_o:")
    for k in range(3):
        A(f"  global_load_dwordx4 v[{28+4*k}:{31+4*k}], v{10+k}, s[18:19] {pollflags}")
    A("  s_cmp_lg_u32 s89, 0")
    A("  s_cbranch_scc1 L_chk")
    A("  s_waitcnt vmcnt(3)")
    def check(base):
        for k in range(3):
            for i in range(4):
                A(f"  v_xor_b32 v{base+4*k+i}, v{base+4*k+i}, v{44+i}")
        A(f"  v_or3_b32 v40, v{base}, v{base+1}, v{base+2}")
        A(f"  v_or3_b32 v41, v{base+3}, v{base+4}, v{base+5}")
        A(f"  v_or3_b32 v42, v{base+6}, v{base+7}, v{base+8}")
        A(f"  v_or3_b32 v40, v{base+9}, v{base+10}, v40")
        A(f"  v_or3_b32 v41, v{base+11}, v41, v42")
        A("  v_or_b32 v40, v40, v41")
        A("  v_and_b32 v40, 0xff, v40")
        A("  v_cmp_ne_u32 vcc, 0, v40")
    check(16)
    A("  s_cbranch_vccnz L_retry_ml")
    A("L_wts:")
    A("  v_cndmask_b32 v20, v20, v5, s[52:53]")
    A("  v_cndmask_b32 v24, v24, v5, s[54:55]")
    A("  v_max3_f32 v40, v16, v20, v24")
    def xred(op):
        A("  s_nop 1")
        A(f"  {op}_dpp v40, v40, v40 row_ror:8 row_mask:0xf bank_mask:0xf")
        A("  v_mov_b32 v41, v40")
        A("  s_nop 1")
        A("  v_permlane16_swap_b32 v40, v41")
        A(f"  {op} v40, v40, v41")
        A("  v_mov_b32 v41, v40")
        A("  s_nop 1")
        A("  v_permlane32_swap_b32 v40, v41")
        A(f"  {op} v40, v40, v41")
    xred("v_max_f32")
    for k in range(3):
        A(f"  v_sub_f32 v{16+4*k}, v{16+4*k}, v40")
    for k in range(3):
        A(f"  v_exp_f32 v{16+4*k}, v{16+4*k}")
    A("  v_mul_f32 v40, v16, v17")
    A("  v_fmac_f32 v40, v20, v21")
    A("  v_fmac_f32 v40, v24, v25")
    xred("v_add_f32")
    A("  v_rcp_f32 v40, v40")
    A("  s_mov_b32 s89, 1")
    for k in range(3):
        A(f"  v_mul_f32 v{16+4*k}, v{16+4*k}, v40")
    stamp(9)
    A("L_chk:")
    A("  s_sub_u32 s96, s96, 1")
    A("  s_waitcnt vmcnt(0)")
    A("  s_cbranch_scc1 L_switch")
    check(28)
    if psleep:
        A("  s_cbranch_vccz L_o_done")
        A(f"  s_sleep {psleep}")
        A("  s_branch L_o")
    else:
        A("  s_cbranch_vccnz L_o")
    A("L_o_done:")
    stamp(10)
    for i in range(4):
        A(f"  v_mul_f32 v{28+i}, v16, v{28+i}")
    for k in (1, 2):
        for i in range(4):
            A(f"  v_fmac_f32 v{28+i}, v{16+4*k}, v{28+4*k+i}")
    A("  s_nop 0")
    A("  v_permlane16_swap_b32 v28, v29")
    A("  v_permlane16_swap_b32 v30, v31")
    A("  v_add_f32 v28, v28, v29")
    A("  v_add_f32 v30, v30, v31")
    A("  s_nop 1")
    A("  v_permlane32_swap_b32 v28, v30")
    A("  v_add_f32 v28, v28, v30")
    A("  s_nop 1")
    A("  v_add_f32_dpp v28, v28, v28 row_ror:8 row_mask:0xf bank_mask:0xf")
    A("  s_mov_b32 exec_lo, 0x00ff00ff")
    A("  s_mov_b32 exec_hi, 0x00ff00ff")
    A("  v_cvt_pk_bf16_f32 v28, v28, v28")
    A(f"  global_store_short v9, v28, s[14:15] {outflags}")
    A("L_cend:")
    if "amp" in xs or "ampc" in xs or "ampk" in xs:
        A("  s_waitcnt vmcnt(0)")
        A("  s_memrealtime s[66:67]")
        A("  s_memtime s[70:71]")
        A("  s_waitcnt lgkmcnt(0)")
        if "amp" in xs:
            A("  s_sub_u32 s68, s66, s62")
            A("  s_mul_i32 s68, s68, 9")
        elif "ampk" in xs:
            A("  s_sub_u32 s68, s72, s62")
            A("  s_mul_i32 s68, s68, 9")
        else:
            A("  s_sub_u32 s68, s70, s64")
            A("  s_mul_i32 s68, s68, 3")
            A("  s_lshr_b32 s68, s68, 3")
        A("L_amp:")
        A("  s_sleep 4")
        A("  s_memrealtime s[70:71]")
        A("  s_waitcnt lgkmcnt(0)")
        A("  s_sub_u32 s70, s70, s66")
        A("  s_cmp_lt_u32 s70, s68")
        A("  s_cbranch_scc1 L_amp")
    if stamps:
        A("  s_waitcnt vmcnt(0)")
        stamp(11)
        A("  s_sub_u32 s96, %d, s96" % n1)
        A(f"  v_writelane_b32 v{VST}, s96, 29")
        stamp_store()
    A("  s_endpgm")
    A("L_retry_ml:")
    A("  s_sub_u32 s96, s96, 1")
    A("  s_waitcnt vmcnt(0)")
    A("  s_cbranch_scc0 L_ml")
    A("L_switch:")
    A("  s_cmp_lg_u32 s78, 0")
    A("  s_cbranch_scc1 L_cend")
    A("  s_mov_b32 s78, 1")
    A(f"  s_mov_b32 s96, {SPIN}")
    for k in range(6):
        A(f"  v_add_u32 v{10+k}, {BOFF}, v{10+k}")
    A("  s_cmp_lg_u32 s89, 0")
    A("  s_cbranch_scc1 L_o")
    A("  s_branch L_ml")

    A("L_cons:")
    stamp(4)
    if "ampk" in xs and "p_b0" in xs:
        A("  s_memrealtime s[72:73]")
    A(f"  s_mov_b32 s96, {SPIN}")
    A("  global_load_dword v44, v8, s[16:17] sc1" if "nononce" not in xs else "  v_mov_b32 v44, 0x12345679")
    A("  s_and_b32 s93, s2, 7               ; x")
    A("  s_lshl_b32 s85, s93, 1")
    A("  s_bfe_u32 s86, s2, 0x40003         ; slice")
    A("  s_sub_u32 s92, 31, s79")
    A("  s_sub_u32 s90, s79, 1")
    A("  s_lshl_b32 s91, s79, 3")
    A("  s_bitcmp1_b32 s2, 7")
    A("  s_cselect_b32 s92, s92, s90        ; n-1")
    A("  s_cselect_b32 s91, s91, 0")
    A("  s_addc_u32 s85, s85, 0")
    A("  s_add_u32 s91, s91, s93")
    A("  v_lshrrev_b32 v2, 3, v1            ; pp")
    A("  v_and_b32 v9, 7, v1                ; q")
    A("  v_add_u32 v3, 8, v2")
    A("  v_add_u32 v5, 16, v2")
    A("  v_cmp_lt_u32 s[52:53], s92, v3     ; absent k=1")
    A("  v_cmp_lt_u32 s[54:55], s92, v5     ; absent k=2")
    A("  v_min_u32 v3, s92, v3")
    A("  v_min_u32 v5, s92, v5")
    A("  s_bfe_u32 s94, s86, 0x20001        ; h")
    A("  s_lshl_b32 s95, s94, 4")
    A("  s_lshl_b32 s97, s86, 7")
    A("  v_lshl_add_u32 v7, v9, 4, s97")
    for k, r in enumerate([2, 3, 5]):
        A(f"  v_lshl_add_u32 v{r}, v{r}, 3, s91")
        A(f"  v_mul_u32_u24 v{r}, {rec}, v{r}")
        A(f"  v_add_u32 v{10+k}, v{r}, v7           ; O addr")
        A(f"  v_add_u32 v{13+k}, s95, v{r}")
    A("  s_lshr_b32 s95, s94, 1")
    A("  s_lshl_b32 s95, s95, 13")
    A("  s_and_b32 s97, s86, 3")
    A("  s_lshl_b32 s97, s97, 7             ; (h&1)*256 + k*128")
    A("  s_add_u32 s95, s95, s97")
    A("  s_lshl_b32 s97, s85, 9")
    A("  s_add_u32 s95, s95, s97")
    A("  s_and_b32 s97, s86, 8              ; plane*8")
    A("  s_add_u32 s95, s95, s97")
    A("  v_lshrrev_b32 v7, 4, v1            ; rho")
    A("  v_lshlrev_b32 v7, 1, v7")
    A("  v_lshl_add_u32 v9, v9, 4, v7")
    A("  v_add_u32 v9, s95, v9")
    A("  v_mul_u32_u24 v2, 40, v1")
    A("  v_add_u32 v3, s81, v4")
    A(f"  v_mov_b32 v5, {f32(-3e38)}")
    A(f"  s_mov_b32 s87, {f32(C)}")
    A("  s_mov_b32 s88, 0xffffff00")
    A("  s_mov_b32 s89, 0")
    if "prewrite" in xs:
        for k in range(4):
            A(f"  v_mov_b32 v{60+k}, 0")
        A("  global_store_dwordx4 v3, v[60:63], s[18:19]")
        A("  global_store_dwordx4 v3, v[60:63], s[18:19] offset:1024")
        A("  s_mov_b64 exec, 0xff")
        A("  global_store_dwordx4 v3, v[60:63], s[18:19] offset:2048")
        A("  s_mov_b64 exec, -1")
    A("  s_branch L_non")
    A("L_general:")
    A(f"  ds_read_b128 v[{S}:{S+3}], v3 offset:{LDS_DESC+32}")
    A(f"  v_readfirstlane_b32 s74, v{D+3}")
    mkmask(NUG)
    A(f"  s_mul_i32 s90, s84, {NUG}")
    A("  v_add_u32 v8, s90, v1")
    A("  s_waitcnt vmcnt(0) lgkmcnt(0)")
    A(f"  v_add_u32 v8, v8, v{S+2}             ; unit")
    A("  v_lshrrev_b32 v9, 2, v8            ; i")
    A(f"  v_cmp_lt_u32 vcc, v9, v{S}")
    A(f"  v_add_u32 v10, v9, v{S+1}")
    A("  s_nop 0")
    A("  v_cndmask_b32 v10, v10, v9, vcc")
    A("  v_and_b32 v10, 0x1ff, v10")
    A("  v_lshlrev_b32 v10, 2, v10")
    A(f"  ds_read_b32 v10, v10 offset:{LDS_TAB}")
    A(f"  v_cmp_lt_u32 vcc, v8, v{S+3}")
    A("  v_and_b32 v9, 3, v8")
    A("  v_lshl_add_u32 v9, v9, 14, s91")
    A(f"  v_mov_b32 v11, {KVBYTES}")
    A("  s_waitcnt lgkmcnt(0)")
    A("  v_min_u32 v10, 384, v10")
    A("  v_lshl_add_u32 v9, v10, 16, v9")
    A("  v_cndmask_b32 v9, v11, v9, vcc")
    A("  s_nop 0")
    for j in range(NUG):
        A(f"  v_readlane_b32 s{SO+j}, v9, {j}")
    A("  s_and_b32 s75, s74, 1")
    A("  s_bfe_u32 s76, s74, 0x10001")
    A("  s_mul_i32 s75, s75, 0x00ff00ff")
    A("  s_mul_i32 s76, s76, 0xff00ff00")
    A("  s_or_b32 s75, s75, s76")
    for j in range(NUG):
        r = X + 4 * j
        A(f"  buffer_load_dwordx4 v[{r}:{r+3}], v{VK}, s[20:23], s{SO+j} offen{NT}")
    A("  s_mov_b32 exec_lo, s75")
    A("  s_mov_b32 exec_hi, s75")
    for i in range(4):
        A(f"  v_mov_b32 v{Q+i}, 0")
    A("  s_mov_b64 exec, -1")
    A("  s_waitcnt vmcnt(0)")
    tg = lambda j: Y + 4 * (j % 4)
    for g in range(NUG // 4):
        js = list(range(4 * g, 4 * g + 4))
        qk_mfma(js, kreg, tg)
        A("  s_nop 4")
        qk_rest(js, tg)
    arrive()
    for j in range(NUG):
        r = X + 4 * j
        A(f"  buffer_load_dwordx4 v[{r}:{r+3}], v{VV}, s[24:27], s{SO+j} offen{NT}")
    waitmax("g")
    pcalc(NUG)
    pv(NUG, kreg)
    A("  s_branch L_tail")
    A('.section .rodata,"a"')
    A(".p2align 6")
    A(f".amdhsa_kernel {NAME}_kernel")
    A("  .amdhsa_next_free_vgpr 168")
    A("  .amdhsa_next_free_sgpr 102")
    A("  .amdhsa_accum_offset 168")
    A("  .amdhsa_group_segment_fixed_size 0")
    A("  .amdhsa_kernarg_size 64")
    A("  .amdhsa_user_sgpr_count 2")
    A("  .amdhsa_user_sgpr_kernarg_segment_ptr 1")
    A("  .amdhsa_system_sgpr_workgroup_id_x 1")
    A(".end_amdhsa_kernel")
    return "\n".join(L) + "\n"

if __name__ == "__main__":
    import argparse
    ap = argparse.ArgumentParser()
    ap.add_argument("-o", required=True)
    ap.add_argument("--stamps", action="store_true")
    ap.add_argument("--no-nt", action="store_true")
    ap.add_argument("--no-codepf", action="store_true")
    ap.add_argument("--poll", default="sc1")
    ap.add_argument("--pub", default="sc1")
    ap.add_argument("--out", default="")
    ap.add_argument("--cnts", default="14,18,16,16")
    ap.add_argument("--loc", default="")
    ap.add_argument("--n1", type=int, default=64)
    ap.add_argument("--xs", default="")
    ap.add_argument("--rec", type=int, default=2304)
    ap.add_argument("--psleep", type=int, default=0)
    a = ap.parse_args()
    open(a.o, "w").write(gen(a.stamps, not a.no_nt, a.poll, not a.no_codepf, a.pub,
                             tuple(int(x) for x in a.cnts.split(",")), a.out, tuple(a.xs.split(",")), a.rec, a.psleep, a.loc, a.n1))
```

```python
NAME = "standalone__paged_block_table_kv_radixattention__decode"
def mk(fn, mode, W, cnts=None, clears=0, helper=False, win=0, hmap=None):
    L = []
    A = L.append
    NW = W + (1 if helper else 0)
    A(f"; @launch grid=(256,1,1) block=({64*NW},1,1) lds=0")
    A('.amdgcn_target "amdgcn-amd-amdhsa--gfx950"')
    A(".text")
    A(f".globl {NAME}_kernel\n.p2align 12\n.p2align 8\n.type {NAME}_kernel,@function\n{NAME}_kernel:")
    A("  s_memrealtime s[70:71]")
    A("  s_load_dwordx16 s[4:19], s[0:1], 0")
    A("  v_lshrrev_b32 v14, 6, v0")
    A("  v_and_b32 v1, 63, v0")
    A("  v_readfirstlane_b32 s28, v14")
    A("  v_lshrrev_b32 v2, 4, v1")
    A("  v_and_b32 v3, 15, v1")
    A("  v_lshlrev_b32 v8, 12, v2")
    A("  v_lshl_add_u32 v8, v3, 4, v8")
    A("  s_lshr_b32 s29, s2, 6      ; quad")
    A("  s_and_b32 s30, s2, 63      ; r")
    TU = 1212
    if mode == "qh":
        A("  s_lshl_b32 s29, s29, 2")
        A("  s_add_u32 s29, s29, s28    ; head")
        A(f"  s_mul_i32 s31, s30, {TU}")
        A(f"  s_add_u32 s32, s31, {TU}")
        A("  s_lshr_b32 s31, s31, 6")
        A("  s_lshr_b32 s32, s32, 6")
        nper = 19; step = 1
    elif mode == "xcd":
        A("  s_and_b32 s29, s2, 7")
        A("  s_lshr_b32 s30, s2, 3      ; j")
        A("  s_and_b32 s37, s29, 1")
        A("  s_cmp_eq_u32 s37, 0")
        A(f"  s_cselect_b32 s39, {cnts[0]}, {cnts[2]}     ; nA")
        A(f"  s_mov_b32 s40, {(1<<24)//cnts[0]+1}")
        A(f"  s_cselect_b32 s40, s40, {(1<<24)//cnts[2]+1}")
        A(f"  s_mov_b32 s41, {(1<<24)//cnts[1]+1}")
        A(f"  s_cselect_b32 s41, s41, {(1<<24)//cnts[3]+1}")
        A("  s_lshl_b32 s29, s29, 1")
        A("  s_sub_u32 s35, s30, s39")
        A("  s_cmp_ge_u32 s30, s39")
        A("  s_cselect_b32 s35, s35, s30")
        A("  s_cselect_b32 s34, s41, s40")
        A("  s_addc_u32 s29, s29, 0")
        A(f"  s_mul_i32 s31, s35, {TU*256}")
        A(f"  s_add_u32 s32, s31, {TU*256}")
        A("  s_mul_hi_u32 s31, s31, s34")
        A("  s_mul_hi_u32 s32, s32, s34")
        A("  s_add_u32 s31, s31, s28")
        nper = (TU // min(cnts) + 1 + W - 1) // W; step = W
    elif mode == "xpair":
        A("  s_and_b32 s29, s2, 7")
        A("  s_lshr_b32 s30, s2, 3      ; j")
        A("  s_lshl_b32 s29, s29, 1")
        A("  s_and_b32 s37, s28, 1")
        A("  s_add_u32 s29, s29, s37")
        A(f"  s_mul_i32 s31, s30, {TU}")
        A(f"  s_add_u32 s32, s31, {TU}")
        A("  s_lshr_b32 s31, s31, 5")
        A("  s_lshr_b32 s32, s32, 5")
        A("  s_lshr_b32 s37, s28, 1")
        A("  s_add_u32 s31, s31, s37")
        nper = (38 + W // 2 - 1) // (W // 2); step = W // 2
    else:
        A("  s_mov_b32 s33, 0")
        A(f"  s_mov_b32 s34, {(1<<24)//cnts[0]+1}")
        acc = 0
        A("  s_mov_b32 s35, s30")
        for k in range(1, 4):
            acc += cnts[k-1]
            A(f"  s_cmp_ge_u32 s30, {acc}")
            A(f"  s_cselect_b32 s33, {k}, s33")
            A(f"  s_cselect_b32 s34, {(1<<24)//cnts[k]+1}, s34")
            A(f"  s_sub_u32 s36, s30, {acc}")
            A(f"  s_cmp_ge_u32 s30, {acc}")
            A(f"  s_cselect_b32 s35, s36, s35")
        A("  s_lshl_b32 s29, s29, 2")
        A("  s_add_u32 s29, s29, s33    ; head")
        A(f"  s_mul_i32 s31, s35, {TU*256}")
        A(f"  s_add_u32 s32, s31, {TU*256}")
        A("  s_mul_hi_u32 s31, s31, s34")
        A("  s_mul_hi_u32 s32, s32, s34")
        A("  s_add_u32 s31, s31, s28")
        nper = (TU // min(cnts) + 1 + W - 1) // W; step = W
    if hmap:
        t = sum(h << (4 * i) for i, h in enumerate(hmap))
        A(f"  s_mov_b32 s42, {t & 0xffffffff:#x}")
        A(f"  s_mov_b32 s43, {t >> 32:#x}")
        A("  s_lshl_b32 s29, s29, 2")
        A("  s_lshr_b64 s[42:43], s[42:43], s29")
        A("  s_and_b32 s29, s42, 15")
    A("  s_lshl_b32 s29, s29, 8")
    A("  s_lshl_b32 s38, s2, 14")
    A("  v_lshl_add_u32 v9, v1, 4, s38")
    A("  s_waitcnt lgkmcnt(0)")
    A("  s_memrealtime s[72:73]")
    if helper:
        A(f"  s_cmp_lg_u32 s28, {W}")
        A("  s_cbranch_scc1 L_comp")
        A("  s_setprio 3")
        for c in range(clears):
            A(f"  global_store_dwordx4 v9, v[16:19], s[18:19] offset:{(c%4)*1024} sc1")
            if c % 4 == 3: A("  v_add_u32 v9, 0x1000, v9")
        A("  s_memrealtime s[74:75]")
        A("  s_branch L_fin")
        A("L_comp:")
    A("  s_mov_b32 s20, s6\n  s_mov_b32 s21, s7\n  s_mov_b32 s22, 25165824\n  s_mov_b32 s23, 0x20000")
    A("  s_mov_b32 s24, s8\n  s_mov_b32 s25, s9\n  s_mov_b32 s26, 25165824\n  s_mov_b32 s27, 0x20000")
    reg = 16
    for t in range(2):
        srd = "s[20:23]" if t == 0 else "s[24:27]"
        for k in range(nper):
            A(f"  s_add_u32 s36, s31, {k*step}")
            A("  s_cmp_ge_u32 s36, s32")
            A(f"  s_cbranch_scc1 L_skip{t}")
            A("  s_lshl_b32 s36, s36, 14")
            A("  s_add_u32 s36, s36, s29")
            if win:
                A(f"  s_waitcnt vmcnt({win-1})")
            A(f"  buffer_load_dwordx4 v[{reg}:{reg+3}], v8, {srd}, s36 offen nt")
            reg += 4
        A(f"L_skip{t}:")
    A("  s_memrealtime s[74:75]")
    A("L_fin:")
    A("  s_waitcnt vmcnt(0)")
    A("  s_memrealtime s[76:77]")
    A("  s_waitcnt lgkmcnt(0)")
    A("  s_lshl_b32 s46, s2, 4")
    A("  s_add_u32 s46, s46, s28")
    A("  s_lshl_b32 s46, s46, 7")
    A("  s_add_u32 s46, s46, 0x800000")
    A("  v_mov_b32 v15, s46")
    A("  s_mov_b64 exec, 1")
    for k in range(4):
        A(f"  v_mov_b32 v16, s{70+2*k}")
        A(f"  global_store_dword v15, v16, s[18:19] offset:{4*k}")
    A("  s_endpgm")
    nv = max(reg, 32)
    A(f""".section .rodata,"a"
.p2align 6
.amdhsa_kernel {NAME}_kernel
  .amdhsa_next_free_vgpr {nv}
  .amdhsa_next_free_sgpr 102
  .amdhsa_accum_offset {min(256,(nv+3)//4*4)}
  .amdhsa_group_segment_fixed_size 0
  .amdhsa_kernarg_size 64
  .amdhsa_user_sgpr_count 2
  .amdhsa_user_sgpr_kernarg_segment_ptr 1
  .amdhsa_system_sgpr_workgroup_id_x 1
.end_amdhsa_kernel
""")
    open(fn, "w").write("\n".join(L))


files = []
def add(f, *a, **k):
    mk(f, *a, **k); files.append(f)
id_ = list(range(16))
m31 = sum([[4*q+3, 4*q+1, 4*q, 4*q+2] for q in range(4)], [])
m21 = sum([[4*q+2, 4*q+1, 4*q, 4*q+3] for q in range(4)], [])
mfar = [10, 1, 0, 11, 14, 5, 4, 15, 2, 9, 8, 3, 6, 13, 12, 7]
for nm, hm in (("id", id_), ("m31", m31), ("m21", m21), ("far", mfar)):
    add(f"hp_{nm}_1418_w4.s", "xcd", 4, cnts=[14,18,16,16], hmap=hm)
    add(f"hp_{nm}_1616_w4.s", "xcd", 4, cnts=[16,16,16,16], hmap=hm)
    add(f"hp_{nm}_1616n5_w4.s", "xcd", 4, cnts=[16,16,16,16], hmap=hm, win=5)
print(" ".join(files))
print(", ".join('"dev/%s"' % f for f in files))
```
